```python
import torch

def _softmax(x, axis=-1):
    return torch.softmax(x, dim=axis)
def _gelu(x):
    return torch.nn.functional.gelu(x, approximate="tanh")
def _silu(x):
    return torch.nn.functional.silu(x)
def _sigmoid(x):
    return torch.sigmoid(x)
def _layernorm(x, axis=-1, eps=1e-5):
    m = x.mean(dim=axis, keepdim=True)
    v = x.var(dim=axis, keepdim=True, unbiased=False)
    return (x - m) / torch.sqrt(v + eps)
def _scatter_add(tgt, idx, src, axis=0):
    return tgt.clone().index_add_(axis, idx, src)
def _segment_sum(src, seg, n):
    out = torch.zeros((n,) + src.shape[1:], dtype=src.dtype)
    return out.index_add_(0, seg, src)
def _pad(x, pw):
    flat = tuple(v for pair in reversed(pw) for v in pair)
    return torch.nn.functional.pad(x, flat)

kernel_name = 'recurrent_scan__sliding_block_cached__mixer_channel_mlp__decode'

def setup_inputs():

    _w = (lambda a: (lambda t: t.to(torch.bfloat16) if t.is_floating_point() else t)(torch.as_tensor(a)))
    def _A_setup():
        B, Sq, D = 1, 1, 512
        Hq, Hkv, Sk, Dh = 32, 32, 8192, 128
        assert Hq % Hkv == 0, (Hq, Hkv)
        return {
            "x": _w((lambda *s: torch.randn(*s, dtype=torch.bfloat16) * 0.05)(B, Sq, D)),
            "k_cache": _w((lambda *s: torch.randn(*s, dtype=torch.bfloat16) * 3.2)(B, Hkv, Sk, Dh)),
            "v_cache": _w((lambda *s: torch.randn(*s, dtype=torch.bfloat16) * 3.2)(B, Hkv, Sk, Dh)),
            "wq": _w((lambda *s: torch.randn(*s, dtype=torch.bfloat16) * 3.2)(D, Hq * Dh) * (D ** -0.5)),
            "wo": _w((lambda *s: torch.randn(*s, dtype=torch.bfloat16) * 3.2)(Hq * Dh, D) * ((Hq * Dh) ** -0.5)),
        }
    _A_in = _A_setup()

    def _B_setup():
        B, S, D, F = 1, 1, 512, 1376
        return {
            "x": _w((lambda *s: torch.randn(*s, dtype=torch.bfloat16) * 0.05)(B, S, D)),
            "w1": _w((lambda *s: torch.randn(*s, dtype=torch.bfloat16) * 3.2)(D, F) * (D ** -0.5)),
            "b1": _w((lambda *s: torch.randn(*s, dtype=torch.bfloat16) * 3.2)(F)),
            "w2": _w((lambda *s: torch.randn(*s, dtype=torch.bfloat16) * 0.4)(F, D) * (F ** -0.5)),
            "b2": _w((lambda *s: torch.randn(*s, dtype=torch.bfloat16) * 0.4)(D)),
        }
    _B_in = _B_setup()

    return {
        "A_x": _A_in["x"],
        "A_k_cache": _A_in["k_cache"],
        "A_v_cache": _A_in["v_cache"],
        "A_wq": _A_in["wq"],
        "A_wo": _A_in["wo"],
        "B_x": _B_in["x"],
        "B_w1": _B_in["w1"],
        "B_b1": _B_in["b1"],
        "B_w2": _B_in["w2"],
        "B_b2": _B_in["b2"],
    }

def reference(A_x, A_k_cache, A_v_cache, A_wq, A_wo, B_x, B_w1, B_b1, B_w2, B_b2):
    def _A_ref(x, k_cache, v_cache, wq, wo):
        B, Sq, D = x.shape
        Hq, Dh = 32, 128
        Hkv, Sk = k_cache.shape[1], k_cache.shape[2]
        W = min(4096, max(256, Sk // 4))
        rep = Hq // Hkv
        q = (lambda x, *d: x.permute(*d))((x @ wq).reshape(B, Sq, Hq, Dh), 0, 2, 1, 3)
        k = (lambda x, n, axis: torch.repeat_interleave(x, n, dim=axis))(k_cache[:, :, Sk - W:, :], rep, axis=1)
        v = (lambda x, n, axis: torch.repeat_interleave(x, n, dim=axis))(v_cache[:, :, Sk - W:, :], rep, axis=1)
        scores = torch.einsum("bhqd,bhkd->bhqk", q, k) * (Dh ** -0.5)
        p = _softmax(scores, axis=-1)
        o = torch.einsum("bhqk,bhkd->bhqd", p, v)
        return (lambda x, *d: x.permute(*d))(o, 0, 2, 1, 3).reshape(B, Sq, Hq * Dh) @ wo

    def _B_ref(x, w1, b1, w2, b2):
        y = _layernorm(x, axis=-1)
        h = _gelu(torch.einsum("bsd,df->bsf", y, w1) + b1)
        return torch.einsum("bsf,fd->bsd", h, w2) + b2

    x = A_x
    xn = _layernorm(x, axis=-1)
    s = _A_ref(xn, A_k_cache, A_v_cache, A_wq, A_wo)
    g = _silu(_B_ref(xn, B_w1, B_b1, B_w2, B_b2))
    return x + s * g
```

```python
import sys, struct

KN = 'recurrent_scan__sliding_block_cached__mixer_channel_mlp__decode_kernel'

def f2u(x):
    return struct.unpack('<I', struct.pack('<f', x))[0]

LOG2E = 1.4426950408889634
WS_Q = 0x10000
WS_Z = 0x60000
WS_O = 0xB0000
WS_Y = 0x100000
WS_B = 0x140000
WS_ST = 0x200000
L_Q = 0; L_ZERO = 256; L_MAX = 272; L_SUM = 288; L_O = 512; L_Y = 2560; LDS_BYTES = 8192

DPPF = 'row_mask:0xf bank_mask:0xf'


class G:
    def __init__(self, opt):
        self.L = []
        self.o = opt
        self.nst = 0

    def __call__(self, s):
        for line in s.strip('\n').split('\n'):
            line = line.strip()
            if not line:
                continue
            self.L.append(line if line.endswith(':') else '    ' + line)

    def stamp(self, i):
        if self.o.get('diag'):
            self(f's_memrealtime s[{60 + 2 * i}:{61 + 2 * i}]')

    def stamp_out(self, n, wave_expr_sgpr):
        if not self.o.get('diag'):
            return
        self(f'''
        s_waitcnt lgkmcnt(0)
        s_lshl_b32 s41, s2, 3
        s_add_u32 s41, s41, {wave_expr_sgpr}
        s_lshl_b32 s41, s41, 7
        s_add_u32 s41, s41, {WS_ST}
        v_mov_b32 v2, s41
        s_mov_b64 exec, 1
        ''')
        for i in range(n):
            self(f'v_mov_b32 v3, s{60 + 2 * i}')
            self(f'global_store_dword v2, v3, s[32:33] offset:{4 * i}')
            self('s_nop 1')


def wave_sum(g, regs, op='v_add_f32'):
    pad = max(0, 2 - (len(regs) - 1))
    for ctl in ('row_ror:1 ' + DPPF, 'row_ror:2 ' + DPPF, 'row_ror:4 ' + DPPF, 'row_ror:8 ' + DPPF,
                'row_bcast:15 row_mask:0xa bank_mask:0xf', 'row_bcast:31 row_mask:0xc bank_mask:0xf'):
        if pad:
            g(f's_nop {pad - 1}')
        for r in regs:
            g(f'{op}_dpp {r}, {r}, {r} {ctl}')


def bf_round(g, dst, src):
    g(f'v_cvt_pk_bf16_f32 {dst}, {src}, {src}')
    g(f'v_and_b32 {dst}, 0xffff0000, {dst}')


def layernorm_stats(g, e, t0, t1, smean, vmeanb, vrinv):
    g(f'''
    v_add_f32 {t0}, {e[0]}, {e[1]}
    v_add_f32 {t1}, {e[2]}, {e[3]}
    v_add_f32 {t0}, {t0}, {e[4]}
    v_add_f32 {t1}, {t1}, {e[5]}
    v_add_f32 {t0}, {t0}, {e[6]}
    v_add_f32 {t1}, {t1}, {e[7]}
    v_add_f32 {t0}, {t0}, {t1}
    ''')
    wave_sum(g, [t0])
    g(f'''
    v_mul_f32 {t0}, {hex(f2u(1.0 / 512))}, {t0}
    s_nop 0
    v_readlane_b32 {smean}, {t0}, 63
    s_nop 1
    v_subrev_f32 {t0}, {smean}, {e[0]}
    v_subrev_f32 {vmeanb}, {smean}, {e[1]}
    v_mul_f32 {t0}, {t0}, {t0}
    v_mul_f32 {t1}, {vmeanb}, {vmeanb}
    ''')
    for i in range(2, 8, 2):
        g(f'''
        v_subrev_f32 {vrinv}, {smean}, {e[i]}
        v_subrev_f32 {vmeanb}, {smean}, {e[i + 1]}
        v_fmac_f32 {t0}, {vrinv}, {vrinv}
        v_fmac_f32 {t1}, {vmeanb}, {vmeanb}
        ''')
    g(f'v_add_f32 {t0}, {t0}, {t1}')
    g(f'v_mov_b32 {vmeanb}, {smean}')
    wave_sum(g, [t0])
    g(f'v_mul_f32 {t0}, {hex(f2u(1.0 / 512))}, {t0}')
    bf_round(g, vmeanb, vmeanb)
    g(f'v_readlane_b32 {smean}, {t0}, 63')
    g('s_nop 1')
    g(f'v_mov_b32 {t0}, {smean}')
    bf_round(g, t0, t0)
    g(f'v_add_f32 {t0}, {hex(f2u(1e-5))}, {t0}')
    bf_round(g, t0, t0)
    g(f'v_sqrt_f32 {t0}, {t0}')
    g('s_nop 0')
    bf_round(g, t0, t0)
    g(f'v_rcp_f32 {vrinv}, {t0}')
    g('s_nop 0')


def masks(g, M4, M8, t0, t1):
    g(f'''
    v_and_b32 {t0}, 1, v1
    v_lshlrev_b32 {t0}, 4, {t0}
    v_mov_b32 {t1}, 0xffff
    v_lshlrev_b32 {t0}, {t0}, {t1}
    v_bfe_u32 {t1}, v1, 1, 2
    ''')
    for j in range(4):
        g(f'v_cmp_eq_u32 s[{44 + 2 * j}:{45 + 2 * j}], {j}, {t1}')
        g(f'v_mov_b32 v{M4 + j}, 0')
    for j in range(4):
        g(f'v_mov_b32_dpp v{M4 + j}, {t0} quad_perm:[0,1,2,3] row_mask:0xf bank_mask:{hex(1 << j)}')
        g(f'v_cndmask_b32 v{M8 + j}, 0, {t0}, s[{44 + 2 * j}:{45 + 2 * j}]')


def retry(g, name, back):
    g(f'''
    {name}:
    s_sub_u32 s40, s40, 1
    s_cbranch_scc0 {back}
    s_endpgm
    ''')


def gen(opt):
    g = G(opt)
    NPRE = opt.get('npre', 1)
    NT = 'nt' if opt.get('nt', 1) else ''
    WNT = 'nt' if opt.get('wnt', 1) else ''
    OUTF = opt.get('outf', '')
    M4 = 192; M8 = 196
    g.stamp(0)
    g('''
    s_load_dwordx16 s[8:23], s[0:1], 0
    s_load_dwordx8 s[24:31], s[0:1], 64
    s_load_dwordx2 s[32:33], s[0:1], 96
    v_readfirstlane_b32 s3, v0
    s_cmp_ge_u32 s2, 256
    s_cbranch_scc1 L_end
    s_and_b32 s4, s2, 31
    s_lshr_b32 s5, s2, 5
    v_and_b32 v1, 63, v0
    s_cmp_lt_u32 s3, 64
    s_cbranch_scc1 L_aux
    ''')
    KR = 16; VR = 80; WO = 144; QB = 160; DT = 176
    g(f'''
    s_lshl_b32 s7, s4, 21
    s_lshl_b32 s35, s5, 16
    s_add_u32 s7, s7, s35
    s_lshl_b32 s35, s3, 8
    s_add_u32 s7, s7, s35
    s_and_b32 s35, s2, 24
    s_lshl_b32 s35, s35, 9
    s_add_u32 s7, s7, s35
    s_add_u32 s7, s7, 0x17c000
    v_lshlrev_b32 v2, 4, v1
    v_and_b32 v3, 0x30, v2
    v_and_b32 v4, 0xc0, v2
    v_lshl_or_b32 v3, v4, 2, v3
    v_lshrrev_b32 v4, 4, v1
    v_lshl_or_b32 v3, v4, 6, v3
    v_add_u32 v{KR + 12}, s7, v3
    v_add_u32 v{VR + 12}, s7, v2
    ''')
    for T in range(1, 4):
        g(f'v_xor_b32 v{KR + 16 * T + 12}, {hex(T << 12)}, v{KR + 12}')
    for T in range(1, 4):
        g(f'v_xor_b32 v{VR + 16 * T + 12}, {hex(T << 12)}, v{VR + 12}')
    g('s_waitcnt lgkmcnt(0)')
    g.stamp(1)

    def tile(base, T, sp):
        for i in range(4):
            r = base + 16 * T + 4 * i
            g(f'global_load_dwordx4 v[{r}:{r + 3}], v{base + 16 * T + 12}, {sp} offset:{1024 * i} {NT}')
    for T in range(4):
        tile(KR, T, 's[10:11]')
    for T in range(NPRE):
        tile(VR, T, 's[12:13]')
    g('s_load_dword s34, s[32:33], 0')
    g.stamp(2)
    masks(g, M4, M8, 'v5', 'v6')
    g(f'''
    v_and_b32 v5, 0x30, v2
    v_lshl_or_b32 v5, v4, 6, v5
    ''')
    for t in range(4):
        g(f'v_mov_b32 v{200 + t}, {L_ZERO}')
    for t in range(4):
        g(f'v_mov_b32_dpp v{200 + t}, v5 quad_perm:[0,1,2,3] row_mask:0xf bank_mask:{hex(1 << t)}')
    g(f'''
    s_lshr_b32 s6, s3, 6
    s_sub_u32 s6, s6, 1
    s_lshl_b32 s36, s4, 3
    s_add_u32 s36, s36, s5
    s_lshl_b32 s36, s36, 10
    s_and_b32 s35, s4, 3
    s_lshl_b32 s35, s35, 5
    s_lshl_b32 s37, s5, 7
    s_add_u32 s35, s35, s37
    v_and_b32 v5, 7, v1
    v_and_b32 v6, 1, v4
    v_lshlrev_b32 v6, 1, v6
    v_lshl_or_b32 v6, v5, 2, v6
    v_add_u32 v204, s35, v6
    s_lshl_b32 s35, s4, 17
    s_add_u32 s35, s35, s37
    s_lshl_b32 s38, s6, 15
    s_add_u32 s35, s35, s38
    v_bfe_u32 v6, v1, 3, 1
    v_lshlrev_b32 v7, 13, v4
    v_lshl_or_b32 v7, v6, 12, v7
    v_lshl_or_b32 v7, v5, 4, v7
    v_add_u32 v{WO + 12}, s35, v7
    ''')
    g(f'''
    s_lshl_b32 s35, s4, 13
    s_lshl_b32 s38, s6, 8
    s_add_u32 s35, s35, s38
    s_add_u32 s35, s35, {WS_O}
    v_lshlrev_b32 v7, 10, v5
    v_lshl_or_b32 v7, v4, 6, v7
    v_lshl_or_b32 v7, v6, 5, v7
    v_add_u32 v205, s35, v7
    ''')
    g(f'''
    v_and_b32 v7, 15, v1
    v_lshlrev_b32 v8, 6, v7
    v_lshl_or_b32 v8, v4, 4, v8
    s_add_u32 s35, s36, {WS_O}
    v_add_u32 v206, s35, v8
    s_lshl_b32 s35, s6, 9
    s_add_u32 s35, s35, {L_O}
    v_lshl_add_u32 v207, v1, 3, s35
    s_mul_i32 s35, s6, 1280
    s_add_u32 s35, s35, {L_Y}
    v_mul_u32_u24 v8, 320, v4
    v_lshl_add_u32 v8, v7, 4, v8
    v_add_u32 v208, s35, v8
    v_bfe_u32 v8, v1, 2, 1
    v_mul_u32_u24 v8, 320, v8
    v_lshrrev_b32 v9, 3, v1
    v_lshl_add_u32 v8, v9, 4, v8
    v_and_b32 v9, 3, v1
    v_lshl_add_u32 v8, v9, 2, v8
    v_add_u32 v209, {L_Y}, v8
    s_lshl_b32 s35, s5, 5
    s_add_u32 s35, s35, s4
    s_lshl_b32 s35, s35, 9
    s_add_u32 s35, s35, {WS_Y}
    v_lshl_add_u32 v210, v1, 3, s35
    ''')
    g(f'''
    s_lshl_b32 s35, s5, 14
    s_and_b32 s38, s4, 3
    s_lshl_b32 s38, s38, 7
    s_add_u32 s35, s35, s38
    s_add_u32 s35, s35, {WS_B + 4096}
    v_lshrrev_b32 v8, 3, v1
    v_lshlrev_b32 v8, 9, v8
    v_lshl_or_b32 v8, v5, 4, v8
    v_add_u32 v211, s35, v8
    v_add_u32 v212, 0x2000, v211
    s_lshl_b32 s39, s6, 2
    v_mov_b32 v213, s39
    v_and_b32 v8, 1, v4
    v_cmp_eq_u32 s[42:43], 1, v8
    s_mov_b32 s40, 100000
    ''')
    g('s_barrier')
    g.stamp(3)
    for T in range(NPRE, 4):
        tile(VR, T, 's[12:13]')
    g('''
    global_load_ushort v214, v204, s[8:9]
    global_load_ushort v215, v204, s[26:27]
    global_load_ushort v216, v204, s[28:29]
    s_waitcnt lgkmcnt(0)
    s_add_u32 s34, s34, 0x01010101
    ''')
    g.stamp(4)
    g('s_barrier')
    g.stamp(5)
    for t in range(4):
        g(f'ds_read_b128 v[{QB + 4 * t}:{QB + 4 * t + 3}], v{200 + t}')
    g('s_waitcnt vmcnt(19) lgkmcnt(0)')
    for tp in range(4):
        for T in range(4):
            a = KR + 16 * T + 4 * tp
            c = '0' if tp == 0 else f'v[{DT + 4 * T}:{DT + 4 * T + 3}]'
            g(f'v_mfma_f32_16x16x32_bf16 v[{DT + 4 * T}:{DT + 4 * T + 3}], v[{a}:{a + 3}], v[{QB + 4 * tp}:{QB + 4 * tp + 3}], {c}')
    g('s_nop 4')
    for r in range(4):
        for T in range(4):
            if r == 0:
                g(f'v_mov_b32_dpp v{8 + T}, v{DT + 4 * T} quad_perm:[0,0,0,0] {DPPF}')
            else:
                g(f'v_add_f32_dpp v{8 + T}, v{DT + 4 * T + r}, v{8 + T} quad_perm:[{r},{r},{r},{r}] {DPPF}')
    sc = hex(f2u(128 ** -0.5))
    g(f'''
    v_cvt_pk_bf16_f32 v12, v8, v9
    v_cvt_pk_bf16_f32 v13, v10, v11
    v_lshlrev_b32 v8, 16, v12
    v_and_b32 v9, 0xffff0000, v12
    v_lshlrev_b32 v10, 16, v13
    v_and_b32 v11, 0xffff0000, v13
    v_mul_f32 v8, {sc}, v8
    v_mul_f32 v9, {sc}, v9
    v_mul_f32 v10, {sc}, v10
    v_mul_f32 v11, {sc}, v11
    v_cvt_pk_bf16_f32 v12, v8, v9
    v_cvt_pk_bf16_f32 v13, v10, v11
    v_lshlrev_b32 v8, 16, v12
    v_and_b32 v9, 0xffff0000, v12
    v_lshlrev_b32 v10, 16, v13
    v_and_b32 v11, 0xffff0000, v13
    v_max_f32 v12, v8, v9
    v_max3_f32 v12, v10, v11, v12
    s_nop 1
    v_max_f32_dpp v12, v12, v12 row_ror:4 {DPPF}
    s_nop 1
    v_max_f32_dpp v12, v12, v12 row_ror:8 {DPPF}
    s_nop 1
    v_max_f32_dpp v12, v12, v12 row_bcast:15 row_mask:0xa bank_mask:0xf
    s_nop 1
    v_max_f32_dpp v12, v12, v12 row_bcast:31 row_mask:0xc bank_mask:0xf
    s_nop 0
    v_readlane_b32 s35, v12, 63
    s_nop 1
    v_mov_b32 v12, s35
    ds_write_b32 v213, v12 offset:{L_MAX}
    v_mov_b32 v13, 0
    s_waitcnt lgkmcnt(0)
    s_barrier
    ds_read_b128 v[176:179], v13 offset:{L_MAX}
    s_mov_b32 s35, {hex(f2u(LOG2E))}
    s_waitcnt lgkmcnt(0)
    v_max_f32 v12, v176, v177
    v_max3_f32 v12, v178, v179, v12
    v_mul_f32 v217, s35, v12
    v_fma_f32 v8, v8, s35, -v217
    v_fma_f32 v9, v9, s35, -v217
    v_fma_f32 v10, v10, s35, -v217
    v_fma_f32 v11, v11, s35, -v217
    v_exp_f32 v8, v8
    v_exp_f32 v9, v9
    v_exp_f32 v10, v10
    v_exp_f32 v11, v11
    ''')
    for j in range(4):
        r = WO + 4 * j
        g(f'global_load_dwordx4 v[{r}:{r + 3}], v{WO + 12}, s[16:17] offset:{1024 * j} {WNT}')
    g(f'''
    v_add_f32 v12, v8, v9
    v_add_f32 v13, v10, v11
    v_cvt_pk_bf16_f32 v8, v8, v8
    v_add_f32 v12, v12, v13
    v_cvt_pk_bf16_f32 v9, v9, v9
    v_cvt_pk_bf16_f32 v10, v10, v10
    v_add_f32_dpp v12, v12, v12 row_ror:4 {DPPF}
    v_cvt_pk_bf16_f32 v11, v11, v11
    ''')
    thread = [f'v_add_f32_dpp v12, v12, v12 row_ror:8 {DPPF}',
              'v_add_f32_dpp v12, v12, v12 row_bcast:15 row_mask:0xa bank_mask:0xf',
              'v_add_f32_dpp v12, v12, v12 row_bcast:31 row_mask:0xc bank_mask:0xf',
              'v_readlane_b32 s35, v12, 63',
              'v_mov_b32 v12, s35',
              f'ds_write_b32 v213, v12 offset:{L_SUM}']
    for t in range(16):
        for j in range(4):
            g(f'v_and_b32_dpp v{KR + 4 * t + j}, v{8 + t // 4}, v{M4 + j} row_newbcast:{4 * (t % 4)} {DPPF}')
        if t < len(thread):
            g(thread[t])
    g.stamp(6)
    OA = 220
    for t in range(16):
        if t in (0, 4, 8):
            g(f's_waitcnt vmcnt({22 - (t + 3)})')
        elif t >= 12:
            g(f's_waitcnt vmcnt({22 - t})')
        c = '0' if t == 0 else f'v[{OA}:{OA + 3}]'
        g(f'v_mfma_f32_16x16x32_bf16 v[{OA}:{OA + 3}], v[{KR + 4 * t}:{KR + 4 * t + 3}], v[{VR + 4 * t}:{VR + 4 * t + 3}], {c}')
    g.stamp(7)
    g(f'''
    s_cmp_eq_u32 s6, 0
    v_mov_b32 v13, 0
    s_nop 5
    ds_write_b64 v207, v[{OA}:{OA + 1}]
    s_waitcnt lgkmcnt(0)
    s_barrier
    s_cbranch_scc0 L_poll1
    ds_read2st64_b64 v[176:179], v207 offset0:1 offset1:2
    ds_read_b64 v[180:181], v207 offset:1536
    ds_read_b128 v[184:187], v13 offset:{L_SUM}
    v_mov_b32 v{OA + 2}, s34
    s_waitcnt lgkmcnt(2)
    v_pk_add_f32 v[{OA}:{OA + 1}], v[{OA}:{OA + 1}], v[176:177]
    s_waitcnt lgkmcnt(1)
    v_pk_add_f32 v[178:179], v[178:179], v[180:181]
    s_waitcnt lgkmcnt(0)
    v_pk_add_f32 v[184:185], v[184:185], v[186:187]
    v_pk_add_f32 v[{OA}:{OA + 1}], v[{OA}:{OA + 1}], v[178:179]
    v_add_f32 v184, v184, v185
    v_cndmask_b32 v{OA + 3}, v217, v184, s[42:43]
    global_store_dwordx4 v206, v[{OA}:{OA + 3}], s[32:33] sc1
    L_poll1:
    global_load_dwordx4 v[176:179], v205, s[32:33] sc1
    global_load_dwordx4 v[180:183], v205, s[32:33] offset:16 sc1
    s_waitcnt vmcnt(0)
    v_bitop3_b32 v8, v178, v182, s34 bitop3:0x7e
    v_cmp_ne_u32 vcc, 0, v8
    s_cbranch_vccnz L_retry1
    ''')
    g.stamp(8)
    g(f'''
    v_max_f32_dpp v8, v179, v179 quad_perm:[1,0,3,2] {DPPF}
    s_nop 1
    v_max_f32_dpp v8, v8, v8 quad_perm:[2,3,0,1] {DPPF}
    s_nop 1
    v_max_f32_dpp v8, v8, v8 row_half_mirror {DPPF}
    v_sub_f32 v8, v179, v8
    v_exp_f32 v8, v8
    s_nop 0
    v_mul_f32 v183, v8, v183
    v_mul_f32 v176, v8, v176
    v_mul_f32 v177, v8, v177
    v_mul_f32 v180, v8, v180
    v_mul_f32 v181, v8, v181
    ''')
    for ctl in ('quad_perm:[1,0,3,2]', 'quad_perm:[2,3,0,1]', 'row_half_mirror'):
        for r in (183, 176, 177, 180, 181):
            g(f'v_add_f32_dpp v{r}, v{r}, v{r} {ctl} {DPPF}')
    g('v_rcp_f32 v183, v183')
    g('s_nop 0')
    src = (176, 177, 180, 181)
    for j in range(4):
        g(f'v_mul_f32 v{src[j]}, v183, v{src[j]}')
    for j in range(4):
        g(f'v_cvt_pk_bf16_f32 v{src[j]}, v{src[j]}, v{src[j]}')
    YA = 224
    for j in range(5):
        if j < 4:
            for jj in range(4):
                g(f'v_and_b32 v{KR + 4 * j + jj}, v{src[j]}, v{M8 + jj}')
        else:
            g('s_nop 1')
        if j >= 1:
            k = j - 1
            c = '0' if k == 0 else f'v[{YA}:{YA + 3}]'
            g(f'v_mfma_f32_16x16x32_bf16 v[{YA}:{YA + 3}], v[{KR + 4 * k}:{KR + 4 * k + 3}], v[{WO + 4 * k}:{WO + 4 * k + 3}], {c}')
    g(f'''
    s_cmp_eq_u32 s6, 0
    s_nop 6
    ds_write_b128 v208, v[{YA}:{YA + 3}]
    s_waitcnt lgkmcnt(0)
    s_barrier
    s_cbranch_scc0 L_notw0
    ''')
    for w in range(4):
        g(f'ds_read_b32 v{176 + 2 * w}, v209 offset:{1280 * w}')
        g(f'ds_read_b32 v{177 + 2 * w}, v209 offset:{1280 * w + 768}')
    g(f'''
    v_mov_b32 v9, s34
    s_waitcnt lgkmcnt(4)
    v_pk_add_f32 v[176:177], v[176:177], v[178:179]
    s_waitcnt lgkmcnt(0)
    v_pk_add_f32 v[180:181], v[180:181], v[182:183]
    v_pk_add_f32 v[176:177], v[176:177], v[180:181]
    v_add_f32 v8, v176, v177
    global_store_dwordx2 v210, v[8:9], s[32:33] sc1
    ''')
    g.stamp(9)
    g.stamp_out(10, '1')
    g('s_endpgm')
    g('L_notw0:')
    g.stamp(9)
    g(f'''
    s_lshr_b32 s35, s4, 2
    s_cmp_eq_u32 s35, s5
    s_cselect_b32 s35, s6, 0
    s_cmp_eq_u32 s35, 1
    s_cbranch_scc0 L_done
    v_lshlrev_b32 v214, 16, v214
    v_lshlrev_b32 v215, 16, v215
    s_mov_b32 s37, 0
    L_poll2:
    global_load_dwordx4 v[176:179], v211, s[32:33] offset:-4096 sc1
    global_load_dwordx4 v[180:183], v211, s[32:33] sc1
    global_load_dwordx4 v[184:187], v212, s[32:33] offset:-4096 sc1
    global_load_dwordx4 v[188:191], v212, s[32:33] sc1
    s_waitcnt vmcnt(2)
    v_bitop3_b32 v8, v177, v179, s34 bitop3:0x7e
    v_bitop3_b32 v9, v181, v183, s34 bitop3:0x7e
    v_add_f32 v176, v176, v180
    v_add_f32 v178, v178, v182
    s_waitcnt vmcnt(0)
    v_bitop3_b32 v10, v185, v187, s34 bitop3:0x7e
    v_bitop3_b32 v11, v189, v191, s34 bitop3:0x7e
    v_or3_b32 v8, v8, v9, v10
    v_or_b32 v8, v8, v11
    v_cmp_ne_u32 vcc, 0, v8
    v_add_f32 v184, v184, v188
    v_add_f32 v186, v186, v190
    s_cbranch_vccnz L_retry2
    v_add_f32 v176, v176, v184
    v_add_f32 v178, v178, v186
    s_nop 0
    v_add_f32_dpp v176, v176, v176 row_ror:8 {DPPF}
    v_add_f32_dpp v178, v178, v178 row_ror:8 {DPPF}
    s_cmp_eq_u32 s37, 0
    s_nop 0
    v_permlane16_swap_b32 v176, v178
    v_add_f32 v176, v176, v178
    v_mov_b32 v178, v176
    s_nop 1
    v_permlane32_swap_b32 v176, v178
    v_add_f32 v176, v176, v178
    v_cvt_pk_bf16_f32 v176, v176, v176
    v_and_b32 v176, 0xffff0000, v176
    s_cbranch_scc0 L_final
    v_add_f32 v176, v176, v215
    v_cvt_pk_bf16_f32 v176, v176, v176
    v_and_b32 v176, 0xffff0000, v176
    v_mul_f32 v8, {hex(f2u(-LOG2E))}, v176
    v_exp_f32 v8, v8
    v_add_u32 v211, {hex((WS_Y - WS_B) & 0xffffffff)}, v211
    v_add_f32 v8, 1.0, v8
    v_rcp_f32 v8, v8
    v_add_u32 v212, {hex((WS_Y - WS_B) & 0xffffffff)}, v212
    v_mul_f32 v215, v176, v8
    v_cvt_pk_bf16_f32 v215, v215, v215
    v_and_b32 v215, 0xffff0000, v215
    s_mov_b32 s37, 1
    s_branch L_poll2
    L_final:
    v_mul_f32 v176, v176, v215
    v_cvt_pk_bf16_f32 v176, v176, v176
    v_and_b32 v176, 0xffff0000, v176
    v_add_f32 v176, v176, v214
    v_cvt_pk_bf16_f32 v176, v176, v176
    s_mov_b64 exec, 0x00ff00ff
    global_store_short v204, v176, s[28:29] {OUTF}
    s_cmp_eq_u32 s2, 0
    s_cbranch_scc0 L_done
    v_mov_b32 v8, 0
    v_mov_b32 v9, s34
    s_mov_b64 exec, 1
    global_store_dword v8, v9, s[32:33] sc1
    L_done:
    ''')
    g.stamp(10)
    if opt.get('diag'):
        g('s_add_u32 s6, s6, 1')
    g.stamp_out(11, 's6')
    g('L_end:')
    g('s_endpgm')
    retry(g, 'L_retry1', 'L_poll1')
    retry(g, 'L_retry2', 'L_poll2')

    WQ = 16; W1 = 80; W2 = 144; E = [f'v{168 + i}' for i in range(8)]; AS = (176, 180); QA = 184; ZA = 188
    g(f'''
    L_aux:
    s_setprio 3
    v_and_b32 v2, 15, v1
    v_lshrrev_b32 v3, 4, v1
    v_lshlrev_b32 v10, 4, v1
    s_lshl_b32 s6, s5, 7
    v_lshlrev_b32 v11, 1, v3
    v_lshl_or_b32 v11, v2, 3, v11
    v_add_u32 v8, s6, v11
    s_lshl_b32 s7, s5, 19
    s_lshl_b32 s35, s4, 8
    s_add_u32 s7, s7, s35
    v_lshlrev_b32 v12, 4, v2
    v_lshl_or_b32 v13, v3, 13, v12
    v_add_u32 v{WQ}, s7, v13
    ''')
    for t in range(1, 16):
        g(f'v_add_u32 v{WQ + 4 * t}, {hex(32768 * t)}, v{WQ}')
    g('s_waitcnt lgkmcnt(0)')
    g.stamp(1)
    g(f'''
    global_load_dwordx4 v[4:7], v10, s[8:9]
    global_load_ushort v8, v8, s[8:9]
    ''')
    for t in range(16):
        r = WQ + 4 * t
        g(f'global_load_dwordx4 v[{r}:{r + 3}], v{r}, s[14:15] {WNT}')
    g(f'''
    s_load_dword s34, s[32:33], 0
    s_mul_i32 s36, s4, 43
    s_add_u32 s37, s36, 43
    s_lshr_b32 s36, s36, 3
    s_lshr_b32 s37, s37, 3
    s_sub_u32 s37, s37, s36
    s_mul_i32 s7, s5, {64 * 2752}
    s_lshl_b32 s35, s36, 4
    s_add_u32 s7, s7, s35
    v_mul_u32_u24 v13, 2752, v3
    v_add3_u32 v{W1}, v13, v12, s7
    v_lshl_or_b32 v13, v3, 2, v12
    v_add_u32 v9, s35, v13
    s_lshl_b32 s7, s36, 13
    s_add_u32 s7, s7, s6
    v_lshrrev_b32 v13, 3, v2
    v_lshl_or_b32 v13, v3, 1, v13
    v_lshlrev_b32 v13, 10, v13
    v_and_b32 v14, 7, v2
    v_lshl_or_b32 v13, v14, 4, v13
    v_add_u32 v{W2}, s7, v13
    ''')
    for t in range(1, 16):
        g(f'v_add_u32 v{W1 + 4 * t}, {hex(11008 * t)}, v{W1}')
    for t in range(1, 6):
        g(f'v_add_u32 v{W2 + 4 * t}, {hex(8192 * t)}, v{W2}')
    g('s_mov_b32 exec_lo, 0x003f003f')
    g('s_mov_b32 exec_hi, 0x003f003f')
    for t in range(16):
        r = W1 + 4 * t
        g(f'global_load_dwordx4 v[{r}:{r + 3}], v{r}, s[20:21] {WNT}')
    g('global_load_dword v9, v9, s[22:23]')
    g('s_mov_b64 exec, -1')
    for t in range(6):
        r = W2 + 4 * t
        g(f'global_load_dwordx4 v[{r}:{r + 3}], v{r}, s[24:25] {WNT}')
    g.stamp(2)
    masks(g, M4, M8, 'v13', 'v14')
    g(f'''
    s_lshl_b32 s7, s4, 13
    s_lshl_b32 s35, s5, 10
    s_add_u32 s35, s35, s7
    s_add_u32 s35, s35, {WS_Q}
    v_add_u32 v200, s35, v10
    s_add_u32 s7, s7, {WS_Q + 4096}
    v_add_u32 v201, s7, v10
    v_add_u32 v202, {hex(WS_Z - WS_Q)}, v201
    v_add_u32 v205, {hex(WS_Z - WS_Q)}, v200
    v_lshl_or_b32 v203, v3, 2, v12
    s_lshl_b32 s7, s5, 5
    s_add_u32 s7, s7, s4
    s_lshl_b32 s7, s7, 9
    s_add_u32 s7, s7, {WS_B}
    v_and_b32 v13, 1, v3
    v_lshlrev_b32 v13, 5, v13
    v_lshl_or_b32 v13, v2, 6, v13
    v_lshrrev_b32 v14, 1, v3
    v_lshl_or_b32 v13, v14, 3, v13
    v_add_u32 v204, s7, v13
    v_and_b32 v13, 3, v1
    v_lshlrev_b32 v13, 2, v13
    v_mov_b32 v14, 0
    ds_write_b32 v13, v14 offset:{L_ZERO}
    s_mov_b32 s40, 100000
    s_waitcnt vmcnt(39) lgkmcnt(0)
    s_add_u32 s34, s34, 0x01010101
    ''')
    g.stamp(3)
    for i in range(4):
        g(f'v_lshlrev_b32 {E[2 * i]}, 16, v{4 + i}')
        g(f'v_and_b32 {E[2 * i + 1]}, 0xffff0000, v{4 + i}')
    g('v_lshlrev_b32 v8, 16, v8')
    layernorm_stats(g, E, 'v4', 'v5', 's35', 'v6', 'v7')
    g('v_sub_f32 v8, v8, v6')
    bf_round(g, 'v8', 'v8')
    g('v_mul_f32 v8, v8, v7')
    g('v_cvt_pk_bf16_f32 v8, v8, v8')
    g('s_nop 1')

    def gemv16(src, base, acc, vm0):
        for t in range(17):
            if t < 16:
                for j in range(4):
                    g(f'v_and_b32_dpp v{AS[t % 2] + j}, {src}, v{M4 + j} row_newbcast:{t} {DPPF}')
            else:
                g('s_nop 1')
            if t >= 1:
                k = t - 1
                if k % 4 == 0 and k < 12:
                    g(f's_waitcnt vmcnt({vm0 - (k + 3)})')
                elif k >= 12:
                    g(f's_waitcnt vmcnt({vm0 - k})')
                c = '0' if k == 0 else f'v[{acc}:{acc + 3}]'
                a = AS[k % 2]
                g(f'v_mfma_f32_16x16x32_bf16 v[{acc}:{acc + 3}], v[{a}:{a + 3}], v[{base + 4 * k}:{base + 4 * k + 3}], {c}')
    gemv16('v8', WQ, QA, 38)
    for i in range(8):
        g(f'v_sub_f32 {E[i]}, {E[i]}, v6')
    g(f'''
    v_mov_b32 v{QA + 2}, s34
    v_mov_b32 v{QA + 3}, s34
    global_store_dwordx4 v200, v[{QA}:{QA + 3}], s[32:33] sc1
    ''')
    g.stamp(4)
    for i in range(8):
        bf_round(g, E[i], E[i])
    for i in range(8):
        g(f'v_mul_f32 {E[i]}, {E[i]}, v7')
    for i in range(8):
        bf_round(g, E[i], E[i])
    g('v_and_b32 v8, 0xffff0000, v8')
    layernorm_stats(g, E, 'v4', 'v5', 's35', 'v6', 'v7')
    g('v_sub_f32 v8, v8, v6')
    bf_round(g, 'v8', 'v8')
    g('v_mul_f32 v8, v8, v7')
    g('v_cvt_pk_bf16_f32 v8, v8, v8')
    g('s_nop 1')
    gemv16('v8', W1, ZA, 23)
    g(f'''
    s_nop 7
    v_mov_b32 v{ZA + 2}, s34
    v_mov_b32 v{ZA + 3}, s34
    s_mov_b32 exec_lo, 0x003f003f
    s_mov_b32 exec_hi, 0x003f003f
    global_store_dwordx4 v205, v[{ZA}:{ZA + 3}], s[32:33] sc1
    ''')
    g.stamp(5)
    g('s_barrier')
    g.stamp(6)
    ZP = 48; QP = 16

    def polls(base, addr):
        for p in range(8):
            g(f'global_load_dwordx3 v[{base + 4 * p}:{base + 4 * p + 2}], {addr}, s[32:33] offset:{1024 * p - 4096} sc1')

    def check(base, lab):
        for p in range(4):
            g(f'v_bitop3_b32 v{10 + p}, v{base + 8 * p + 2}, v{base + 8 * p + 6}, s34 bitop3:0x7e')
        g(f'''
        v_or3_b32 v10, v10, v11, v12
        v_or_b32 v10, v10, v13
        v_cmp_ne_u32 vcc, 0, v10
        s_cbranch_vccnz {lab}
        ''')

    def sum8(base):
        for st in (1, 2, 4):
            for p in range(0, 8, 2 * st):
                a = base + 4 * p; b = base + 4 * (p + st)
                g(f'v_pk_add_f32 v[{a}:{a + 1}], v[{a}:{a + 1}], v[{b}:{b + 1}]')
    polls(ZP, 'v202')
    g('s_mov_b64 exec, -1')
    g('L_pollq:')
    polls(QP, 'v201')
    g('s_waitcnt vmcnt(0)')
    check(QP, 'L_retryq')
    sum8(QP)
    g(f'''
    v_cvt_pk_bf16_f32 v{QP}, v{QP}, v{QP + 1}
    ds_write_b32 v203, v{QP} offset:{L_Q}
    s_waitcnt lgkmcnt(0)
    ''')
    g.stamp(7)
    g('''
    s_barrier
    s_barrier
    s_mov_b32 exec_lo, 0x003f003f
    s_mov_b32 exec_hi, 0x003f003f
    L_chkz:
    ''')
    check(ZP, 'L_retryz')
    g.stamp(8)
    sum8(ZP)
    z0, z1 = f'v{ZP}', f'v{ZP + 1}'
    k0 = hex(f2u(0.044715)); k1 = hex(f2u(-2.0 * 0.7978845608028654 * LOG2E))
    g(f'''
    v_cvt_pk_bf16_f32 {z0}, {z0}, {z1}
    v_lshlrev_b32 v10, 16, v9
    v_and_b32 v11, 0xffff0000, v9
    v_and_b32 {z1}, 0xffff0000, {z0}
    v_lshlrev_b32 {z0}, 16, {z0}
    v_add_f32 {z0}, {z0}, v10
    v_add_f32 {z1}, {z1}, v11
    v_cvt_pk_bf16_f32 {z0}, {z0}, {z1}
    v_and_b32 {z1}, 0xffff0000, {z0}
    v_lshlrev_b32 {z0}, 16, {z0}
    v_mul_f32 v10, {z0}, {z0}
    v_mul_f32 v11, {z1}, {z1}
    v_mul_f32 v10, v10, {z0}
    v_mul_f32 v11, v11, {z1}
    v_fmamk_f32 v10, v10, {k0}, {z0}
    v_fmamk_f32 v11, v11, {k0}, {z1}
    v_mul_f32 v10, {k1}, v10
    v_mul_f32 v11, {k1}, v11
    v_exp_f32 v10, v10
    v_exp_f32 v11, v11
    s_nop 0
    v_add_f32 v10, 1.0, v10
    v_add_f32 v11, 1.0, v11
    v_rcp_f32 v10, v10
    v_rcp_f32 v11, v11
    s_nop 0
    v_mul_f32 v10, v10, {z0}
    v_mul_f32 v11, v11, {z1}
    v_cvt_pk_bf16_f32 v10, v10, v10
    v_cvt_pk_bf16_f32 v11, v11, v11
    s_mov_b64 exec, -1
    s_nop 1
    ''')
    BA = 184
    for jj in range(6):
        if jj == 5:
            g('s_cmp_eq_u32 s37, 5')
            g('s_cbranch_scc1 L_five')
        a = AS[jj % 2]
        g(f'v_mov_b32_dpp v12, v10 row_newbcast:{jj} row_mask:0xf bank_mask:0x3')
        g(f'v_mov_b32_dpp v12, v11 row_newbcast:{jj} row_mask:0xf bank_mask:0xc')
        for j in range(4):
            g(f'v_and_b32 v{a + j}, v12, v{M8 + j}')
        g('s_nop 1')
        c = '0' if jj == 0 else f'v[{BA}:{BA + 3}]'
        g(f'v_mfma_f32_16x16x32_bf16 v[{BA}:{BA + 3}], v[{a}:{a + 3}], v[{W2 + 4 * jj}:{W2 + 4 * jj + 3}], {c}')
    g(f'''
    L_five:
    s_nop 7
    v_permlane32_swap_b32 v{BA}, v{BA + 1}
    v_permlane32_swap_b32 v{BA + 2}, v{BA + 3}
    v_mov_b32 v11, s34
    v_mov_b32 v13, s34
    v_add_f32_dpp v10, v{BA + 1}, v{BA} row_ror:8 {DPPF}
    v_add_f32_dpp v12, v{BA + 3}, v{BA + 2} row_ror:8 {DPPF}
    s_mov_b32 exec_lo, 0x00ff00ff
    s_mov_b32 exec_hi, 0x00ff00ff
    global_store_dwordx2 v204, v[10:11], s[32:33] sc1
    global_store_dwordx2 v204, v[12:13], s[32:33] offset:16 sc1
    ''')
    g.stamp(9)
    g.stamp_out(10, '0')
    g('s_endpgm')
    retry(g, 'L_retryq', 'L_pollq')
    g('''
    L_retryz:
    s_sub_u32 s40, s40, 1
    s_cbranch_scc1 L_end
    ''')
    polls(ZP, 'v202')
    g('''
    s_waitcnt vmcnt(0)
    s_branch L_chkz
    ''')

    head = open('recurrent_scan__sliding_block_cached__mixer_channel_mlp__decode.s.ref').read().split('; Override launch')[0]
    src = head + f'''; Generated by a hand-written generator script (see header notes below).
; One workgroup per (head, 256-key split); wave 0 = projection/MLP helper, waves 1-4 stream K/V.
; @launch grid=(256,1,1) block=(320,1,1) lds={LDS_BYTES}
.amdgcn_target "amdgcn-amd-amdhsa--gfx950"
.text
.globl {KN}
.p2align 8
.type {KN},@function
{KN}:
''' + '\n'.join(g.L) + f'''
.section .rodata,"a"
.p2align 6
.amdhsa_kernel {KN}
  .amdhsa_next_free_vgpr 232
  .amdhsa_next_free_sgpr 96
  .amdhsa_accum_offset 232
  .amdhsa_group_segment_fixed_size 0
  .amdhsa_kernarg_size 104
  .amdhsa_user_sgpr_count 2
  .amdhsa_user_sgpr_kernarg_segment_ptr 1
  .amdhsa_system_sgpr_workgroup_id_x 1
  .amdhsa_float_denorm_mode_32 3
.end_amdhsa_kernel
'''
    return src


if __name__ == '__main__':
    out = sys.argv[1]
    opt = eval(sys.argv[2]) if len(sys.argv) > 2 else {}
    open(out, 'w').write(gen(opt))
```

```python
import sys, struct

KN = 'recurrent_scan__sliding_block_cached__mixer_channel_mlp__decode_kernel'

def f2u(x):
    return struct.unpack('<I', struct.pack('<f', x))[0]

LOG2E = 1.4426950408889634
WS_Q = 0x10000
WS_Z = 0x60000
WS_O = 0xB0000
WS_Y = 0x100000
WS_B = 0x140000
WS_ST = 0x200000
L_Q = 0; L_ZERO = 256; L_MAX = 272; L_SUM = 288; L_FLAG = 304; L_O = 512; L_Y = 2560; LDS_BYTES = 8192

DPPF = 'row_mask:0xf bank_mask:0xf'


class G:
    def __init__(self, opt):
        self.L = []
        self.o = opt
        self.nst = 0

    def __call__(self, s):
        for line in s.strip('\n').split('\n'):
            line = line.strip()
            if not line:
                continue
            self.L.append(line if line.endswith(':') else '    ' + line)

    def stamp(self, i):
        if self.o.get('diag'):
            self(f's_memrealtime s[{60 + 2 * i}:{61 + 2 * i}]')

    def stamp_out(self, n, wave_expr_sgpr):
        if not self.o.get('diag'):
            return
        self(f'''
        s_waitcnt lgkmcnt(0)
        s_lshl_b32 s41, s2, 3
        s_add_u32 s41, s41, {wave_expr_sgpr}
        s_lshl_b32 s41, s41, 7
        s_add_u32 s41, s41, {WS_ST}
        v_mov_b32 v2, s41
        s_mov_b64 exec, 1
        ''')
        for i in range(n):
            self(f'v_mov_b32 v3, s{60 + 2 * i}')
            self(f'global_store_dword v2, v3, s[32:33] offset:{4 * i}')
            self('s_nop 1')


def wave_sum(g, regs, op='v_add_f32'):
    pad = max(0, 2 - (len(regs) - 1))
    for ctl in ('row_ror:1 ' + DPPF, 'row_ror:2 ' + DPPF, 'row_ror:4 ' + DPPF, 'row_ror:8 ' + DPPF,
                'row_bcast:15 row_mask:0xa bank_mask:0xf', 'row_bcast:31 row_mask:0xc bank_mask:0xf'):
        if pad:
            g(f's_nop {pad - 1}')
        for r in regs:
            g(f'{op}_dpp {r}, {r}, {r} {ctl}')


def bf_round(g, dst, src):
    g(f'v_cvt_pk_bf16_f32 {dst}, {src}, {src}')
    g(f'v_and_b32 {dst}, 0xffff0000, {dst}')


def layernorm_stats(g, e, t0, t1, smean, vmeanb, vrinv):
    g(f'''
    v_add_f32 {t0}, {e[0]}, {e[1]}
    v_add_f32 {t1}, {e[2]}, {e[3]}
    v_add_f32 {t0}, {t0}, {e[4]}
    v_add_f32 {t1}, {t1}, {e[5]}
    v_add_f32 {t0}, {t0}, {e[6]}
    v_add_f32 {t1}, {t1}, {e[7]}
    v_add_f32 {t0}, {t0}, {t1}
    ''')
    wave_sum(g, [t0])
    g(f'''
    v_mul_f32 {t0}, {hex(f2u(1.0 / 512))}, {t0}
    s_nop 0
    v_readlane_b32 {smean}, {t0}, 63
    s_nop 1
    v_subrev_f32 {t0}, {smean}, {e[0]}
    v_subrev_f32 {vmeanb}, {smean}, {e[1]}
    v_mul_f32 {t0}, {t0}, {t0}
    v_mul_f32 {t1}, {vmeanb}, {vmeanb}
    ''')
    for i in range(2, 8, 2):
        g(f'''
        v_subrev_f32 {vrinv}, {smean}, {e[i]}
        v_subrev_f32 {vmeanb}, {smean}, {e[i + 1]}
        v_fmac_f32 {t0}, {vrinv}, {vrinv}
        v_fmac_f32 {t1}, {vmeanb}, {vmeanb}
        ''')
    g(f'v_add_f32 {t0}, {t0}, {t1}')
    g(f'v_mov_b32 {vmeanb}, {smean}')
    wave_sum(g, [t0])
    g(f'v_mul_f32 {t0}, {hex(f2u(1.0 / 512))}, {t0}')
    bf_round(g, vmeanb, vmeanb)
    g(f'v_readlane_b32 {smean}, {t0}, 63')
    g('s_nop 1')
    g(f'v_mov_b32 {t0}, {smean}')
    bf_round(g, t0, t0)
    g(f'v_add_f32 {t0}, {hex(f2u(1e-5))}, {t0}')
    bf_round(g, t0, t0)
    g(f'v_sqrt_f32 {t0}, {t0}')
    g('s_nop 0')
    bf_round(g, t0, t0)
    g(f'v_rcp_f32 {vrinv}, {t0}')
    g('s_nop 0')


def masks(g, M4, M8, t0, t1):
    g(f'''
    v_and_b32 {t0}, 1, v1
    v_lshlrev_b32 {t0}, 4, {t0}
    v_mov_b32 {t1}, 0xffff
    v_lshlrev_b32 {t0}, {t0}, {t1}
    v_bfe_u32 {t1}, v1, 1, 2
    ''')
    for j in range(4):
        g(f'v_cmp_eq_u32 s[{44 + 2 * j}:{45 + 2 * j}], {j}, {t1}')
        g(f'v_mov_b32 v{M4 + j}, 0')
    for j in range(4):
        g(f'v_mov_b32_dpp v{M4 + j}, {t0} quad_perm:[0,1,2,3] row_mask:0xf bank_mask:{hex(1 << j)}')
        g(f'v_cndmask_b32 v{M8 + j}, 0, {t0}, s[{44 + 2 * j}:{45 + 2 * j}]')


def retry(g, name, back):
    g(f'''
    {name}:
    s_sub_u32 s40, s40, 1
    s_cbranch_scc0 {back}
    s_endpgm
    ''')


def gen(opt):
    g = G(opt)
    NPRE = opt.get('npre', 1)
    NT = 'nt' if opt.get('nt', 1) else ''
    WNT = 'nt' if opt.get('wnt', 1) else ''
    OUTF = opt.get('outf', '')
    M4 = 192; M8 = 196
    g.stamp(0)
    g('''
    s_load_dwordx16 s[8:23], s[0:1], 0
    s_load_dwordx8 s[24:31], s[0:1], 64
    s_load_dwordx2 s[32:33], s[0:1], 96
    v_readfirstlane_b32 s3, v0
    s_cmp_ge_u32 s2, 256
    s_cbranch_scc1 L_end
    s_and_b32 s4, s2, 31
    s_lshr_b32 s5, s2, 5
    v_and_b32 v1, 63, v0
    s_cmp_lt_u32 s3, 64
    s_cbranch_scc0 L_stream
    ''')
    pro = g.L; g.L = []
    g('L_stream:')
    KR = 16; VR = 80; WO = 144; QB = 160; DT = 176
    g(f'''
    s_lshl_b32 s7, s4, 21
    s_lshl_b32 s35, s5, 16
    s_add_u32 s7, s7, s35
    s_lshl_b32 s35, s3, 8
    s_add_u32 s7, s7, s35
    s_and_b32 s35, s2, 24
    s_lshl_b32 s35, s35, 9
    s_add_u32 s7, s7, s35
    s_add_u32 s7, s7, 0x17c000
    v_lshlrev_b32 v2, 4, v1
    v_and_b32 v3, 0x30, v2
    v_and_b32 v4, 0xc0, v2
    v_lshl_or_b32 v3, v4, 2, v3
    v_lshrrev_b32 v4, 4, v1
    v_lshl_or_b32 v3, v4, 6, v3
    v_add_u32 v{KR + 12}, s7, v3
    v_add_u32 v{VR + 12}, s7, v2
    ''')
    for T in range(1, 4):
        g(f'v_xor_b32 v{KR + 16 * T + 12}, {hex(T << 12)}, v{KR + 12}')
    for T in range(1, 4):
        g(f'v_xor_b32 v{VR + 16 * T + 12}, {hex(T << 12)}, v{VR + 12}')
    g('s_waitcnt lgkmcnt(0)')
    if opt.get('sb', 41) >= 0:
        g('s_barrier')
    g.stamp(1)

    THR = opt.get('thr', 8)
    WOPOS = opt.get('wopos', 'early')
    nissued = [0]

    thr = [THR]

    def vload(txt):
        if nissued[0] >= thr[0]:
            g(f's_waitcnt vmcnt({thr[0] - 1})')
        elif nissued[0] > 0 and opt.get('gap', 1):
            g('s_nop 0')
        g(txt)
        nissued[0] += 1

    def tile(base, T, sp):
        for i in range(4):
            r = base + 16 * T + 4 * i
            vload(f'global_load_dwordx4 v[{r}:{r + 3}], v{base + 16 * T + 12}, {sp} offset:{1024 * i} {NT}')

    def woloads():
        for j in range(4):
            r = WO + 4 * j
            vload(f'global_load_dwordx4 v[{r}:{r + 3}], v{WO + 12}, s[16:17] offset:{1024 * j} {WNT}')
    SMALL = opt.get('small', 'mid')
    for T in range(2):
        tile(KR, T, 's[10:11]')
    g('s_load_dword s34, s[32:33], 0')
    g.stamp(2)
    masks(g, M4, M8, 'v5', 'v6')
    g(f'''
    v_and_b32 v5, 0x30, v2
    v_lshl_or_b32 v5, v4, 6, v5
    ''')
    for t in range(4):
        g(f'v_mov_b32 v{200 + t}, {L_ZERO}')
    for t in range(4):
        g(f'v_mov_b32_dpp v{200 + t}, v5 quad_perm:[0,1,2,3] row_mask:0xf bank_mask:{hex(1 << t)}')
    g(f'''
    s_lshr_b32 s6, s3, 6
    s_sub_u32 s6, s6, 1
    s_lshl_b32 s36, s4, 3
    s_add_u32 s36, s36, s5
    s_lshl_b32 s36, s36, 10
    s_and_b32 s35, s4, 3
    s_lshl_b32 s35, s35, 5
    s_lshl_b32 s37, s5, 7
    s_add_u32 s35, s35, s37
    v_and_b32 v5, 7, v1
    v_and_b32 v6, 1, v4
    v_lshlrev_b32 v6, 1, v6
    v_lshl_or_b32 v6, v5, 2, v6
    v_add_u32 v204, s35, v6
    s_lshl_b32 s35, s4, 17
    s_add_u32 s35, s35, s37
    s_lshl_b32 s38, s6, 15
    s_add_u32 s35, s35, s38
    v_bfe_u32 v6, v1, 3, 1
    v_lshlrev_b32 v7, 13, v4
    v_lshl_or_b32 v7, v6, 12, v7
    v_lshl_or_b32 v7, v5, 4, v7
    v_add_u32 v{WO + 12}, s35, v7
    ''')
    if 'o' in opt.get('skip', ''):
        g(f'''
        s_lshl_b32 s35, s2, 14
        s_lshl_b32 s38, s6, 12
        s_add_u32 s35, s35, s38
        v_add_u32 v{WO + 12}, s35, v2
        ''')
    g(f'''
    s_lshl_b32 s35, s4, 13
    s_lshl_b32 s38, s6, 8
    s_add_u32 s35, s35, s38
    s_add_u32 s35, s35, {WS_O}
    v_lshlrev_b32 v7, 10, v5
    v_lshl_or_b32 v7, v4, 6, v7
    v_lshl_or_b32 v7, v6, 5, v7
    v_add_u32 v205, s35, v7
    ''')
    g(f'''
    v_and_b32 v7, 15, v1
    v_lshlrev_b32 v8, 6, v7
    v_lshl_or_b32 v8, v4, 4, v8
    s_add_u32 s35, s36, {WS_O}
    v_add_u32 v206, s35, v8
    s_lshl_b32 s35, s6, 9
    s_add_u32 s35, s35, {L_O}
    v_lshl_add_u32 v207, v1, 3, s35
    s_mul_i32 s35, s6, 1280
    s_add_u32 s35, s35, {L_Y}
    v_mul_u32_u24 v8, 320, v4
    v_lshl_add_u32 v8, v7, 4, v8
    v_add_u32 v208, s35, v8
    v_bfe_u32 v8, v1, 2, 1
    v_mul_u32_u24 v8, 320, v8
    v_lshrrev_b32 v9, 3, v1
    v_lshl_add_u32 v8, v9, 4, v8
    v_and_b32 v9, 3, v1
    v_lshl_add_u32 v8, v9, 2, v8
    v_add_u32 v209, {L_Y}, v8
    s_lshl_b32 s35, s5, 5
    s_add_u32 s35, s35, s4
    s_lshl_b32 s35, s35, 9
    s_add_u32 s35, s35, {WS_Y}
    v_lshl_add_u32 v210, v1, 3, s35
    ''')
    g(f'''
    s_lshl_b32 s35, s5, 14
    s_and_b32 s38, s4, 3
    s_lshl_b32 s38, s38, 7
    s_add_u32 s35, s35, s38
    s_add_u32 s35, s35, {WS_B + 4096}
    v_lshrrev_b32 v8, 3, v1
    v_lshlrev_b32 v8, 9, v8
    v_lshl_or_b32 v8, v5, 4, v8
    v_add_u32 v211, s35, v8
    v_add_u32 v212, 0x2000, v211
    s_lshl_b32 s39, s6, 2
    v_mov_b32 v213, s39
    v_and_b32 v8, 1, v4
    v_cmp_eq_u32 s[42:43], 1, v8
    s_mov_b32 s40, 100000
    ''')
    g.stamp(3)
    B0 = opt.get('b0', 4)
    for T in range(2, 4):
        tile(KR, T, 's[10:11]')
        if B0 == T + 1:
            g('s_barrier'); thr[0] = opt.get('thr2', 12)
    B1T = opt.get('b1', 3)
    for T in range(B1T):
        tile(VR, T, 's[12:13]')
        if B0 == T + 5:
            g('s_barrier'); thr[0] = opt.get('thr2', 12)
    rest = []
    for T in range(B1T, 4):
        for i in range(4):
            r = VR + 16 * T + 4 * i
            rest.append(f'global_load_dwordx4 v[{r}:{r + 3}], v{VR + 16 * T + 12}, s[12:13] offset:{1024 * i} {NT}')
    small = ['global_load_ushort v214, v204, s[8:9]', 'global_load_ushort v215, v204, s[26:27]', 'global_load_ushort v216, v204, s[28:29]'] if SMALL == 'mid' else []
    NS = len(small)
    wol = [f'global_load_dwordx4 v[{WO + 4 * j}:{WO + 4 * j + 3}], v{WO + 12}, s[16:17] offset:{1024 * j} {WNT}' for j in range(4)]
    if B1T == 4:
        for l in small: g(l)
        if WOPOS == 'early':
            for l in wol: vload(l)
        else:
            rest += wol
    else:
        rest += small + wol
    NK_AFTER = 4 * B1T + (NS + (4 if WOPOS == 'early' else 0) if B1T == 4 else 0)

    def sprinkle(n):
        for _ in range(min(n, len(rest))):
            g(rest.pop(0))
    g('''
    s_waitcnt lgkmcnt(0)
    s_add_u32 s34, s34, 0x01010101
    ''')
    g.stamp(4)
    g('s_barrier')
    g.stamp(5)
    for t in range(4):
        g(f'ds_read_b128 v[{QB + 4 * t}:{QB + 4 * t + 3}], v{200 + t}')
    g(f'v_mov_b32 v13, 0')
    g(f'ds_read_b32 v13, v13 offset:{L_FLAG}')
    g(f's_waitcnt vmcnt({NK_AFTER}) lgkmcnt(0)')
    for tp in range(4):
        for T in range(4):
            a = KR + 16 * T + 4 * tp
            c = '0' if tp == 0 else f'v[{DT + 4 * T}:{DT + 4 * T + 3}]'
            g(f'v_mfma_f32_16x16x32_bf16 v[{DT + 4 * T}:{DT + 4 * T + 3}], v[{a}:{a + 3}], v[{QB + 4 * tp}:{QB + 4 * tp + 3}], {c}')
    g('v_readfirstlane_b32 s52, v13')
    sprinkle(opt.get('sp0', 2))
    g('s_nop 3')
    for r in range(4):
        for T in range(4):
            if r == 0:
                g(f'v_mov_b32_dpp v{8 + T}, v{DT + 4 * T} quad_perm:[0,0,0,0] {DPPF}')
            else:
                g(f'v_add_f32_dpp v{8 + T}, v{DT + 4 * T + r}, v{8 + T} quad_perm:[{r},{r},{r},{r}] {DPPF}')
    sc = hex(f2u(128 ** -0.5))
    g(f'''
    v_cvt_pk_bf16_f32 v12, v8, v9
    v_cvt_pk_bf16_f32 v13, v10, v11
    v_lshlrev_b32 v8, 16, v12
    v_and_b32 v9, 0xffff0000, v12
    v_lshlrev_b32 v10, 16, v13
    v_and_b32 v11, 0xffff0000, v13
    v_mul_f32 v8, {sc}, v8
    v_mul_f32 v9, {sc}, v9
    v_mul_f32 v10, {sc}, v10
    v_mul_f32 v11, {sc}, v11
    v_cvt_pk_bf16_f32 v12, v8, v9
    v_cvt_pk_bf16_f32 v13, v10, v11
    v_lshlrev_b32 v8, 16, v12
    v_and_b32 v9, 0xffff0000, v12
    v_lshlrev_b32 v10, 16, v13
    v_and_b32 v11, 0xffff0000, v13
    v_max_f32 v12, v8, v9
    v_max3_f32 v12, v10, v11, v12
    s_nop 1
    v_max_f32_dpp v12, v12, v12 row_ror:4 {DPPF}
    s_nop 1
    v_max_f32_dpp v12, v12, v12 row_ror:8 {DPPF}
    s_nop 1
    v_max_f32_dpp v12, v12, v12 row_bcast:15 row_mask:0xa bank_mask:0xf
    s_nop 1
    v_max_f32_dpp v12, v12, v12 row_bcast:31 row_mask:0xc bank_mask:0xf
    s_nop 0
    v_readlane_b32 s35, v12, 63
    s_nop 1
    v_mov_b32 v12, s35
    ds_write_b32 v213, v12 offset:{L_MAX}
    v_mov_b32 v13, 0
    ''')
    sprinkle(opt.get('sp1', 2))
    g(f'''
    s_waitcnt lgkmcnt(0)
    s_barrier
    ds_read_b128 v[176:179], v13 offset:{L_MAX}
    s_mov_b32 s35, {hex(f2u(LOG2E))}
    s_waitcnt lgkmcnt(0)
    v_max_f32 v12, v176, v177
    v_max3_f32 v12, v178, v179, v12
    v_mul_f32 v217, s35, v12
    v_fma_f32 v8, v8, s35, -v217
    v_fma_f32 v9, v9, s35, -v217
    v_fma_f32 v10, v10, s35, -v217
    v_fma_f32 v11, v11, s35, -v217
    v_exp_f32 v8, v8
    v_exp_f32 v9, v9
    v_exp_f32 v10, v10
    v_exp_f32 v11, v11
    ''')
    sprinkle(opt.get('sp2', 3))
    g('s_nop 0')
    g(f'''
    v_add_f32 v12, v8, v9
    v_add_f32 v13, v10, v11
    v_cvt_pk_bf16_f32 v8, v8, v8
    v_add_f32 v12, v12, v13
    v_cvt_pk_bf16_f32 v9, v9, v9
    v_cvt_pk_bf16_f32 v10, v10, v10
    v_add_f32_dpp v12, v12, v12 row_ror:4 {DPPF}
    v_cvt_pk_bf16_f32 v11, v11, v11
    ''')
    thread = [f'v_add_f32_dpp v12, v12, v12 row_ror:8 {DPPF}',
              'v_add_f32_dpp v12, v12, v12 row_bcast:15 row_mask:0xa bank_mask:0xf',
              'v_add_f32_dpp v12, v12, v12 row_bcast:31 row_mask:0xc bank_mask:0xf',
              'v_readlane_b32 s35, v12, 63',
              'v_mov_b32 v12, s35',
              f'ds_write_b32 v213, v12 offset:{L_SUM}']
    for t in range(16):
        for j in range(4):
            g(f'v_and_b32_dpp v{KR + 4 * t + j}, v{8 + t // 4}, v{M4 + j} row_newbcast:{4 * (t % 4)} {DPPF}')
        if t < len(thread):
            g(thread[t])
        if t % 2 == 1:
            sprinkle(1)
    sprinkle(99)
    g.stamp(6)
    OA = 220
    for t in range(16):
        if t in (0, 4, 8):
            g(f's_waitcnt vmcnt({19 + NS - (t + 3)})')
        elif t >= 12:
            g(f's_waitcnt vmcnt({19 + NS - t})')
        c = '0' if t == 0 else f'v[{OA}:{OA + 3}]'
        g(f'v_mfma_f32_16x16x32_bf16 v[{OA}:{OA + 3}], v[{KR + 4 * t}:{KR + 4 * t + 3}], v[{VR + 4 * t}:{VR + 4 * t + 3}], {c}')
    g.stamp(7)
    g(f'''
    s_cmp_eq_u32 s6, 0
    v_mov_b32 v13, 0
    s_nop 5
    ds_write_b64 v207, v[{OA}:{OA + 1}]
    s_waitcnt lgkmcnt(0)
    s_barrier
    ''')
    g.stamp(11)
    g(f'''
    s_cbranch_scc0 L_poll1
    {'s_waitcnt lgkmcnt(0)' if opt.get('diag') else ''}
    ds_read2st64_b64 v[176:179], v207 offset0:1 offset1:2
    ds_read_b64 v[180:181], v207 offset:1536
    ds_read_b128 v[184:187], v13 offset:{L_SUM}
    v_mov_b32 v{OA + 2}, s34
    s_waitcnt lgkmcnt(2)
    v_pk_add_f32 v[{OA}:{OA + 1}], v[{OA}:{OA + 1}], v[176:177]
    s_waitcnt lgkmcnt(1)
    v_pk_add_f32 v[178:179], v[178:179], v[180:181]
    s_waitcnt lgkmcnt(0)
    v_pk_add_f32 v[184:185], v[184:185], v[186:187]
    v_pk_add_f32 v[{OA}:{OA + 1}], v[{OA}:{OA + 1}], v[178:179]
    v_add_f32 v184, v184, v185
    s_cmp_eq_u32 s52, {0 if opt.get('loc', 1) else -1}
    v_cndmask_b32 v{OA + 3}, v217, v184, s[42:43]
    s_cbranch_scc0 L_farpub
    global_store_dwordx4 v206, v[{OA}:{OA + 3}], s[32:33]
    L_poll1:
    global_load_dwordx4 v[176:179], v205, s[32:33] sc1
    global_load_dwordx4 v[180:183], v205, s[32:33] offset:16 sc1
    s_sub_u32 s40, s40, 1
    s_cbranch_scc1 L_end
    s_waitcnt vmcnt(0)
    v_bitop3_b32 v8, v178, v182, s34 bitop3:0x7e
    v_cmp_ne_u32 vcc, 0, v8
    s_cbranch_vccnz L_poll1
    ''')
    g.stamp(8)
    if opt.get('diag'): g('s_sub_u32 s84, 100000, s40')
    g(f'''
    v_max_f32_dpp v8, v179, v179 quad_perm:[1,0,3,2] {DPPF}
    s_nop 1
    v_max_f32_dpp v8, v8, v8 quad_perm:[2,3,0,1] {DPPF}
    s_nop 1
    v_max_f32_dpp v8, v8, v8 row_half_mirror {DPPF}
    v_sub_f32 v8, v179, v8
    v_exp_f32 v8, v8
    s_nop 0
    v_mul_f32 v183, v8, v183
    v_mul_f32 v176, v8, v176
    v_mul_f32 v177, v8, v177
    v_mul_f32 v180, v8, v180
    v_mul_f32 v181, v8, v181
    ''')
    for ctl in ('quad_perm:[1,0,3,2]', 'quad_perm:[2,3,0,1]', 'row_half_mirror'):
        for r in (183, 176, 177, 180, 181):
            g(f'v_add_f32_dpp v{r}, v{r}, v{r} {ctl} {DPPF}')
    g('v_rcp_f32 v183, v183')
    g('s_nop 0')
    src = (176, 177, 180, 181)
    for j in range(4):
        g(f'v_mul_f32 v{src[j]}, v183, v{src[j]}')
    for j in range(4):
        g(f'v_cvt_pk_bf16_f32 v{src[j]}, v{src[j]}, v{src[j]}')
    YA = 224
    for j in range(5):
        if j < 4:
            for jj in range(4):
                g(f'v_and_b32 v{KR + 4 * j + jj}, v{src[j]}, v{M8 + jj}')
        else:
            g('s_nop 1')
        if j >= 1:
            k = j - 1
            c = '0' if k == 0 else f'v[{YA}:{YA + 3}]'
            g(f'v_mfma_f32_16x16x32_bf16 v[{YA}:{YA + 3}], v[{KR + 4 * k}:{KR + 4 * k + 3}], v[{WO + 4 * k}:{WO + 4 * k + 3}], {c}')
    g(f'''
    s_cmp_eq_u32 s6, 0
    s_nop 6
    ds_write_b128 v208, v[{YA}:{YA + 3}]
    s_waitcnt lgkmcnt(0)
    s_barrier
    s_cbranch_scc0 L_notw0
    ''')
    for w in range(4):
        g(f'ds_read_b32 v{176 + 2 * w}, v209 offset:{1280 * w}')
        g(f'ds_read_b32 v{177 + 2 * w}, v209 offset:{1280 * w + 768}')
    g(f'''
    v_mov_b32 v9, s34
    s_waitcnt lgkmcnt(4)
    v_pk_add_f32 v[176:177], v[176:177], v[178:179]
    s_waitcnt lgkmcnt(0)
    v_pk_add_f32 v[180:181], v[180:181], v[182:183]
    v_pk_add_f32 v[176:177], v[176:177], v[180:181]
    v_add_f32 v8, v176, v177
    global_store_dwordx2 v210, v[8:9], s[32:33] sc1
    ''')
    g.stamp(9)
    g.stamp_out(13, '1')
    g('s_endpgm')
    g('L_notw0:')
    g.stamp(9)
    g(f'''
    s_lshr_b32 s35, s4, 2
    s_cmp_eq_u32 s35, s5
    s_cselect_b32 s35, s6, 0
    s_cmp_eq_u32 s35, 1
    s_cbranch_scc0 L_done
    ''')
    if SMALL != 'mid':
        g('''
        global_load_ushort v214, v204, s[8:9]
        global_load_ushort v215, v204, s[26:27]
        s_waitcnt vmcnt(0)
        ''')
    g(f'''
    v_lshlrev_b32 v214, 16, v214
    v_lshlrev_b32 v215, 16, v215
    s_mov_b32 s37, 0
    L_poll2:
    global_load_dwordx4 v[176:179], v211, s[32:33] offset:-4096 sc1
    global_load_dwordx4 v[180:183], v211, s[32:33] sc1
    global_load_dwordx4 v[184:187], v212, s[32:33] offset:-4096 sc1
    global_load_dwordx4 v[188:191], v212, s[32:33] sc1
    s_sub_u32 s40, s40, 1
    s_cbranch_scc1 L_end
    s_waitcnt vmcnt(2)
    v_bitop3_b32 v8, v177, v179, s34 bitop3:0x7e
    v_bitop3_b32 v9, v181, v183, s34 bitop3:0x7e
    v_add_f32 v176, v176, v180
    v_add_f32 v178, v178, v182
    s_waitcnt vmcnt(0)
    v_bitop3_b32 v10, v185, v187, s34 bitop3:0x7e
    v_bitop3_b32 v11, v189, v191, s34 bitop3:0x7e
    v_or3_b32 v8, v8, v9, v10
    v_or_b32 v8, v8, v11
    v_cmp_ne_u32 vcc, 0, v8
    v_add_f32 v184, v184, v188
    v_add_f32 v186, v186, v190
    s_cbranch_vccnz L_poll2
    v_add_f32 v176, v176, v184
    v_add_f32 v178, v178, v186
    s_nop 0
    v_add_f32_dpp v176, v176, v176 row_ror:8 {DPPF}
    v_add_f32_dpp v178, v178, v178 row_ror:8 {DPPF}
    s_cmp_eq_u32 s37, 0
    s_nop 0
    v_permlane16_swap_b32 v176, v178
    v_add_f32 v176, v176, v178
    v_mov_b32 v178, v176
    s_nop 1
    v_permlane32_swap_b32 v176, v178
    v_add_f32 v176, v176, v178
    v_cvt_pk_bf16_f32 v176, v176, v176
    v_and_b32 v176, 0xffff0000, v176
    s_cbranch_scc0 L_final
    v_add_f32 v176, v176, v215
    v_cvt_pk_bf16_f32 v176, v176, v176
    v_and_b32 v176, 0xffff0000, v176
    v_mul_f32 v8, {hex(f2u(-LOG2E))}, v176
    v_exp_f32 v8, v8
    v_add_u32 v211, {hex((WS_Y - WS_B) & 0xffffffff)}, v211
    v_add_f32 v8, 1.0, v8
    v_rcp_f32 v8, v8
    v_add_u32 v212, {hex((WS_Y - WS_B) & 0xffffffff)}, v212
    v_mul_f32 v215, v176, v8
    v_cvt_pk_bf16_f32 v215, v215, v215
    v_and_b32 v215, 0xffff0000, v215
    s_mov_b32 s37, 1
    s_branch L_poll2
    L_final:
    v_mul_f32 v176, v176, v215
    v_cvt_pk_bf16_f32 v176, v176, v176
    v_and_b32 v176, 0xffff0000, v176
    v_add_f32 v176, v176, v214
    v_cvt_pk_bf16_f32 v176, v176, v176
    s_mov_b64 exec, 0x00ff00ff
    global_store_short v204, v176, s[28:29] {OUTF}
    s_cmp_eq_u32 s2, 0
    s_cbranch_scc0 L_done
    v_mov_b32 v8, 0
    v_mov_b32 v9, s34
    s_mov_b64 exec, 1
    global_store_dword v8, v9, s[32:33] sc1
    L_done:
    ''')
    g.stamp(10)
    if opt.get('diag'):
        g('s_add_u32 s6, s6, 1')
    g.stamp_out(13, 's6')
    if opt.get('probe'):
        wv, idx, kind, K = opt['probe']
        mm = 'v_max_u32' if kind == 'max' else 'v_min_u32'
        g(f'''
        s_cmp_eq_u32 s2, 0
        s_cbranch_scc0 L_end
        s_cmp_eq_u32 s6, 2
        s_cbranch_scc0 L_end
        s_mov_b64 exec, -1
        s_memrealtime s[50:51]
        s_waitcnt lgkmcnt(0)
        L_pw:
        s_memrealtime s[52:53]
        s_waitcnt lgkmcnt(0)
        s_sub_u32 s52, s52, s50
        s_cmp_lt_u32 s52, 300
        s_cbranch_scc1 L_pw
        v_lshlrev_b32 v2, 10, v1
        v_add_u32 v2, {WS_ST}, v2
        ''')
        for i in range(4):
            g(f'global_load_dword v{8 + i}, v2, s[32:33] sc1')
            g(f'global_load_dword v{12 + i}, v2, s[32:33] offset:{wv * 128 + idx * 4} sc1')
            g('v_add_u32 v2, 0x10000, v2')
        g(f'''
        s_waitcnt vmcnt(0)
        v_min_u32 v8, v8, v9
        v_min_u32 v10, v10, v11
        v_min_u32 v8, v8, v10
        {mm} v12, v12, v13
        {mm} v14, v14, v15
        {mm} v12, v12, v14
        ''')
        wave_sum(g, ['v8'], 'v_min_u32')
        wave_sum(g, ['v12'], mm)
        g(f'''
        s_nop 1
        v_readlane_b32 s52, v8, 63
        v_readlane_b32 s53, v12, 63
        s_nop 3
        s_sub_u32 s54, s53, s52
        s_min_u32 s54, s54, 3000
        s_mul_i32 s54, s54, {K}
        s_add_u32 s54, s54, 400
        L_pw2:
        s_memrealtime s[52:53]
        s_waitcnt lgkmcnt(0)
        s_sub_u32 s52, s52, s50
        s_cmp_lt_u32 s52, s54
        s_cbranch_scc1 L_pw2
        ''')
    g('L_end:')
    g('s_endpgm')
    g(f'''
    L_farpub:
    global_store_dwordx4 v206, v[{OA}:{OA + 3}], s[32:33] sc1
    s_branch L_poll1
    ''')

    strm = g.L; g.L = []
    WQ = 16; W1 = 80; W2 = 144; E = [f'v{168 + i}' for i in range(8)]; AS = (176, 180); QA = 184; ZA = 188
    if opt.get('cpf', 2):
        g('''
        s_getpc_b64 s[36:37]
        L_pc:
        v_lshlrev_b32 v2, 7, v1
        v_add_u32 v3, 0x2000, v2
        v_min_u32 v3, L_codeend-L_pc-4, v3
        v_min_u32 v2, L_codeend-L_pc-4, v2
        global_load_dword v2, v2, s[36:37]
        ''')
        if opt.get('cpf', 2) > 1:
            g('global_load_dword v3, v3, s[36:37]')
    g(f'''
    s_setprio 3
    v_and_b32 v2, 15, v1
    v_lshrrev_b32 v3, 4, v1
    v_lshlrev_b32 v10, 4, v1
    s_lshl_b32 s6, s5, 7
    v_lshlrev_b32 v11, 1, v3
    v_lshl_or_b32 v11, v2, 3, v11
    v_add_u32 v8, s6, v11
    s_lshl_b32 s7, s5, 19
    s_lshl_b32 s35, s4, 8
    s_add_u32 s7, s7, s35
    v_lshlrev_b32 v12, 4, v2
    v_lshl_or_b32 v13, v3, 13, v12
    v_add_u32 v{WQ}, s7, v13
    s_mov_b32 s38, 0x8000
    ''')
    if 'Q' in opt.get('skip', ''):
        g(f'''
        s_lshl_b32 s7, s2, 14
        v_add_u32 v{WQ}, s7, v10
        s_movk_i32 s38, 0x400
        ''')
    for t in range(1, 16):
        g(f'v_add_u32 v{WQ + 4 * t}, s38, v{WQ + 4 * t - 4}')
    def mlp_addr():
        g(f'''
        s_and_b32 s36, s4, 7
        s_lshr_b32 s37, s4, 3
        s_lshl2_add_u32 s36, s36, s37
        s_mul_i32 s36, {'s36' if opt.get('cg', 1) else 's4'}, 43
        s_add_u32 s37, s36, 43
        s_lshr_b32 s36, s36, 3
        s_lshr_b32 s37, s37, 3
        s_sub_u32 s37, s37, s36
        s_mul_i32 s7, s5, {64 * 2752}
        s_lshl_b32 s35, s36, 4
        s_add_u32 s7, s7, s35
        v_mul_u32_u24 v13, 2752, v3
        v_add3_u32 v{W1}, v13, v12, s7
        v_lshl_or_b32 v13, v3, 2, v12
        v_add_u32 v9, s35, v13
        s_lshl_b32 s7, s36, 13
        s_add_u32 s7, s7, s6
        v_lshrrev_b32 v13, 3, v2
        v_lshl_or_b32 v13, v3, 1, v13
        v_lshlrev_b32 v13, 10, v13
        v_and_b32 v14, 7, v2
        v_lshl_or_b32 v13, v14, 4, v13
        v_add_u32 v{W2}, s7, v13
        s_movk_i32 s38, 11008
        s_movk_i32 s39, 8192
        ''')
        if 'W' in opt.get('skip', ''):
            g(f'''
            s_mul_i32 s7, s2, 5120
            v_mul_u32_u24 v13, 96, v3
            v_add3_u32 v{W1}, v13, v12, s7
            s_movk_i32 s38, 320
            v_add_u32 v{W2}, s7, v10
            s_movk_i32 s39, 896
            ''')
        for t in range(1, 16):
            g(f'v_add_u32 v{W1 + 4 * t}, s38, v{W1 + 4 * t - 4}')
        for t in range(1, 6):
            g(f'v_add_u32 v{W2 + 4 * t}, s39, v{W2 + 4 * t - 4}')
    if not opt.get('late_addr', 1):
        mlp_addr()
    g('s_waitcnt lgkmcnt(0)')
    g('s_load_dword s34, s[32:33], 0')
    g.stamp(1)
    lds_ = ['global_load_dwordx4 v[4:7], v10, s[8:9]', 'global_load_ushort v8, v8, s[8:9]']
    for t in range(16):
        r = WQ + 4 * t
        lds_.append(f'global_load_dwordx4 v[{r}:{r + 3}], v{r}, s[14:15] {WNT}')
    for t in range(16):
        r = W1 + 4 * t
        lds_.append(f'global_load_dwordx4 v[{r}:{r + 3}], v{r}, s[20:21] {WNT}')
    lds_.append('global_load_dword v9, v9, s[22:23]')
    for t in range(6):
        r = W2 + 4 * t
        lds_.append(f'global_load_dwordx4 v[{r}:{r + 3}], v{r}, s[24:25] {WNT}')
    TOUCH = opt.get('touch', '')
    tl = []
    if 'p' in TOUCH:
        g('''
        s_lshl_b32 s38, s4, 21
        s_add_u32 s38, s38, 0x180000
        v_mov_b32 v206, s38
        s_lshl_b32 s38, s4, 17
        v_mov_b32 v207, s38
        v_mov_b32 v208, 0
        ''')
        tl += ['global_load_dword v206, v206, s[12:13] nt', 'global_load_dword v207, v207, s[16:17] nt', 'global_load_dword v209, v208, s[26:27]', 'global_load_dword v208, v208, s[28:29]']
    if 's' in TOUCH:
        g(f'''
        s_lshl_b32 s38, s4, 3
        s_add_u32 s38, s38, s5
        s_lshl_b32 s38, s38, 10
        s_add_u32 s38, s38, {WS_Q}
        v_add_u32 v210, s38, v10
        v_add_u32 v211, {hex(WS_Z - WS_Q)}, v210
        v_add_u32 v212, {hex(WS_O - WS_Q)}, v210
        s_lshl_b32 s38, s5, 5
        s_add_u32 s38, s38, s4
        s_lshl_b32 s38, s38, 9
        s_add_u32 s38, s38, {WS_Y}
        v_lshl_add_u32 v213, v1, 3, s38
        v_add_u32 v214, {hex(WS_B - WS_Y)}, v213
        ''')
        tl += [f'global_load_dword v{r}, v{r}, s[32:33]' for r in range(210, 215)]
    SK = opt.get('skip', '')
    if 'w' in SK:
        lds_ = [l if ('s[20:21]' not in l and 's[24:25]' not in l) else 'global_load_dword v217, v10, s[8:9]' for l in lds_]
    if 'q' in SK:
        lds_ = [l if ('s[14:15]' not in l) else 'global_load_dword v217, v10, s[8:9]' for l in lds_]
    NT_ = len(tl)
    tpos = opt.get('tpos', 18)
    lds_ = lds_[:tpos] + tl + lds_[tpos:]
    for i, l in enumerate(lds_):
        if i == opt.get('sb', 99):
            g('s_barrier')
        if i == 18 + NT_:
            if opt.get('late_addr', 1):
                mlp_addr()
            g('s_mov_b32 exec_lo, 0x003f003f')
            g('s_mov_b32 exec_hi, 0x003f003f')
        if i == 35 + NT_:
            g('s_mov_b64 exec, -1')
        g(l)
    if opt.get('sb', 99) == 99:
        g('s_barrier')
    g.stamp(2)
    masks(g, M4, M8, 'v13', 'v14')
    g(f'''
    s_lshl_b32 s7, s4, 13
    s_lshl_b32 s35, s5, 10
    s_add_u32 s35, s35, s7
    s_add_u32 s35, s35, {WS_Q}
    v_add_u32 v200, s35, v10
    s_add_u32 s7, s7, {WS_Q + 4096}
    v_add_u32 v201, s7, v10
    v_add_u32 v202, {hex(WS_Z - WS_Q)}, v201
    v_add_u32 v205, {hex(WS_Z - WS_Q)}, v200
    v_lshl_or_b32 v203, v3, 2, v12
    s_lshl_b32 s7, s5, 5
    s_add_u32 s7, s7, s4
    s_lshl_b32 s7, s7, 9
    s_add_u32 s7, s7, {WS_B}
    v_and_b32 v13, 1, v3
    v_lshlrev_b32 v13, 5, v13
    v_lshl_or_b32 v13, v2, 6, v13
    v_lshrrev_b32 v14, 1, v3
    v_lshl_or_b32 v13, v14, 3, v13
    v_add_u32 v204, s7, v13
    v_and_b32 v13, 3, v1
    v_lshlrev_b32 v13, 2, v13
    v_mov_b32 v14, 0
    ds_write_b32 v13, v14 offset:{L_ZERO}
    s_mov_b32 s40, 100000
    s_getreg_b32 s39, hwreg(HW_REG_XCC_ID, 0, 4)
    s_waitcnt vmcnt({39 + (NT_ if tpos >= 2 else 0)})
    ''')
    g.stamp(3)
    for i in range(4):
        g(f'v_lshlrev_b32 {E[2 * i]}, 16, v{4 + i}')
        g(f'v_and_b32 {E[2 * i + 1]}, 0xffff0000, v{4 + i}')
    g('v_lshlrev_b32 v8, 16, v8')
    layernorm_stats(g, E, 'v4', 'v5', 's35', 'v6', 'v7')
    g('v_sub_f32 v8, v8, v6')
    bf_round(g, 'v8', 'v8')
    g('v_mul_f32 v8, v8, v7')
    g('v_cvt_pk_bf16_f32 v8, v8, v8')
    g('s_nop 1')

    def gemv16(src, base, acc, vm0):
        for t in range(17):
            if t < 16:
                for j in range(4):
                    g(f'v_and_b32_dpp v{AS[t % 2] + j}, {src}, v{M4 + j} row_newbcast:{t} {DPPF}')
            else:
                g('s_nop 1')
            if t >= 1:
                k = t - 1
                if k % 4 == 0 and k < 12:
                    g(f's_waitcnt vmcnt({vm0 - (k + 3)})')
                elif k >= 12:
                    g(f's_waitcnt vmcnt({vm0 - k})')
                c = '0' if k == 0 else f'v[{acc}:{acc + 3}]'
                a = AS[k % 2]
                g(f'v_mfma_f32_16x16x32_bf16 v[{acc}:{acc + 3}], v[{a}:{a + 3}], v[{base + 4 * k}:{base + 4 * k + 3}], {c}')
    gemv16('v8', WQ, QA, 38 + (NT_ if tpos >= 18 else 0))
    for i in range(8):
        g(f'v_sub_f32 {E[i]}, {E[i]}, v6')
    g(f'''
    s_waitcnt lgkmcnt(0)
    s_add_u32 s34, s34, 0x01010101
    v_mov_b32 v{QA + 2}, s34
    v_mov_b32 v{QA + 3}, s39
    global_store_dwordx4 v200, v[{QA}:{QA + 3}], s[32:33] sc1
    ''')
    NPW = 0
    if opt.get('loc', 1) and opt.get('prew', 0):
        NPW = 1
        g(f'''
        v_add_u32 v14, {hex(WS_O - WS_Q)}, v200
        v_not_b32 v12, v{QA + 2}
        global_store_dwordx4 v14, v[10:13], s[32:33]
        ''')
    g.stamp(4)
    for i in range(8):
        bf_round(g, E[i], E[i])
    for i in range(8):
        g(f'v_mul_f32 {E[i]}, {E[i]}, v7')
    for i in range(8):
        bf_round(g, E[i], E[i])
    g('v_and_b32 v8, 0xffff0000, v8')
    layernorm_stats(g, E, 'v4', 'v5', 's35', 'v6', 'v7')
    g('v_sub_f32 v8, v8, v6')
    bf_round(g, 'v8', 'v8')
    g('v_mul_f32 v8, v8, v7')
    g('v_cvt_pk_bf16_f32 v8, v8, v8')
    g('s_nop 1')
    gemv16('v8', W1, ZA, 23 + NPW)
    g(f'''
    s_nop 7
    v_mov_b32 v{ZA + 2}, s34
    v_mov_b32 v{ZA + 3}, s34
    s_mov_b32 exec_lo, 0x003f003f
    s_mov_b32 exec_hi, 0x003f003f
    global_store_dwordx4 v205, v[{ZA}:{ZA + 3}], s[32:33] sc1
    ''')
    g.stamp(5)
    if opt.get('b0', 4): g('s_barrier')
    g.stamp(6)
    ZP = 48; QP = 16

    def polls(base, addr, n=3):
        if 'p' in SK: return
        for p in range(8):
            g(f'global_load_dwordx{n} v[{base + 4 * p}:{base + 4 * p + n - 1}], {addr}, s[32:33] offset:{1024 * p - 4096} sc1')

    def check(base, lab):
        if 'p' in SK: return
        for p in range(4):
            g(f'v_bitop3_b32 v{10 + p}, v{base + 8 * p + 2}, v{base + 8 * p + 6}, s34 bitop3:0x7e')
        g(f'''
        v_or3_b32 v10, v10, v11, v12
        v_or_b32 v10, v10, v13
        v_cmp_ne_u32 vcc, 0, v10
        s_cbranch_vccnz {lab}
        ''')

    def sum8(base):
        for st in (1, 2, 4):
            for p in range(0, 8, 2 * st):
                a = base + 4 * p; b = base + 4 * (p + st)
                g(f'v_pk_add_f32 v[{a}:{a + 1}], v[{a}:{a + 1}], v[{b}:{b + 1}]')
    g('L_pollq:')
    g('s_mov_b32 exec_lo, 0x003f003f')
    g('s_mov_b32 exec_hi, 0x003f003f')
    polls(ZP, 'v202')
    g('s_mov_b64 exec, -1')
    polls(QP, 'v201', 4)
    g('s_waitcnt vmcnt(0)')
    check(QP, 'L_retryq')
    sum8(QP)
    g(f'''
    v_cvt_pk_bf16_f32 v{QP}, v{QP}, v{QP + 1}
    ds_write_b32 v203, v{QP} offset:{L_Q}
    ''')
    for p in range(4):
        g(f'v_bitop3_b32 v{10 + p}, v{QP + 8 * p + 3}, v{QP + 8 * p + 7}, s39 bitop3:0x7e')
    g(f'''
    v_or3_b32 v10, v10, v11, v12
    v_or_b32 v10, v10, v13
    v_mov_b32 v11, 0
    ds_write_b32 v11, v10 offset:{L_FLAG}
    s_waitcnt lgkmcnt(0)
    ''')
    g.stamp(7)
    g('''
    s_barrier
    s_barrier
    s_mov_b32 exec_lo, 0x003f003f
    s_mov_b32 exec_hi, 0x003f003f
    L_chkz:
    ''')
    check(ZP, 'L_retryz')
    g.stamp(8)
    sum8(ZP)
    z0, z1 = f'v{ZP}', f'v{ZP + 1}'
    k0 = hex(f2u(0.044715)); k1 = hex(f2u(-2.0 * 0.7978845608028654 * LOG2E))
    g(f'''
    v_cvt_pk_bf16_f32 {z0}, {z0}, {z1}
    v_lshlrev_b32 v10, 16, v9
    v_and_b32 v11, 0xffff0000, v9
    v_and_b32 {z1}, 0xffff0000, {z0}
    v_lshlrev_b32 {z0}, 16, {z0}
    v_add_f32 {z0}, {z0}, v10
    v_add_f32 {z1}, {z1}, v11
    v_cvt_pk_bf16_f32 {z0}, {z0}, {z1}
    v_and_b32 {z1}, 0xffff0000, {z0}
    v_lshlrev_b32 {z0}, 16, {z0}
    v_mul_f32 v10, {z0}, {z0}
    v_mul_f32 v11, {z1}, {z1}
    v_mul_f32 v10, v10, {z0}
    v_mul_f32 v11, v11, {z1}
    v_fmamk_f32 v10, v10, {k0}, {z0}
    v_fmamk_f32 v11, v11, {k0}, {z1}
    v_mul_f32 v10, {k1}, v10
    v_mul_f32 v11, {k1}, v11
    v_exp_f32 v10, v10
    v_exp_f32 v11, v11
    s_nop 0
    v_add_f32 v10, 1.0, v10
    v_add_f32 v11, 1.0, v11
    v_rcp_f32 v10, v10
    v_rcp_f32 v11, v11
    s_nop 0
    v_mul_f32 v10, v10, {z0}
    v_mul_f32 v11, v11, {z1}
    v_cvt_pk_bf16_f32 v10, v10, v10
    v_cvt_pk_bf16_f32 v11, v11, v11
    s_mov_b64 exec, -1
    s_nop 1
    ''')
    BA = 184
    for jj in range(6):
        if jj == 5:
            g('s_cmp_eq_u32 s37, 5')
            g('s_cbranch_scc1 L_five')
        a = AS[jj % 2]
        g(f'v_mov_b32_dpp v12, v10 row_newbcast:{jj} row_mask:0xf bank_mask:0x3')
        g(f'v_mov_b32_dpp v12, v11 row_newbcast:{jj} row_mask:0xf bank_mask:0xc')
        for j in range(4):
            g(f'v_and_b32 v{a + j}, v12, v{M8 + j}')
        g('s_nop 1')
        c = '0' if jj == 0 else f'v[{BA}:{BA + 3}]'
        g(f'v_mfma_f32_16x16x32_bf16 v[{BA}:{BA + 3}], v[{a}:{a + 3}], v[{W2 + 4 * jj}:{W2 + 4 * jj + 3}], {c}')
    g(f'''
    L_five:
    s_nop 7
    v_permlane32_swap_b32 v{BA}, v{BA + 1}
    v_permlane32_swap_b32 v{BA + 2}, v{BA + 3}
    v_mov_b32 v11, s34
    v_mov_b32 v13, s34
    v_add_f32_dpp v10, v{BA + 1}, v{BA} row_ror:8 {DPPF}
    v_add_f32_dpp v12, v{BA + 3}, v{BA + 2} row_ror:8 {DPPF}
    s_mov_b32 exec_lo, 0x00ff00ff
    s_mov_b32 exec_hi, 0x00ff00ff
    global_store_dwordx2 v204, v[10:11], s[32:33] sc1
    global_store_dwordx2 v204, v[12:13], s[32:33] offset:16 sc1
    ''')
    g.stamp(9)
    g('s_barrier')
    g('s_barrier')
    g.stamp_out(10, '0')
    g('s_endpgm')
    retry(g, 'L_retryq', 'L_pollq')
    g('''
    L_retryz:
    s_sub_u32 s40, s40, 1
    s_cbranch_scc1 L_end
    ''')
    polls(ZP, 'v202')
    g('''
    s_waitcnt vmcnt(0)
    s_branch L_chkz
    ''')

    aux = g.L
    if opt.get('cpf', 2):
        i0 = next(i for i, l in enumerate(aux) if 's_setprio 3' in l)
        import re
        aux = aux[:i0] + [re.sub(r'\bv3\b', 'v216', re.sub(r'\bv2\b', 'v215', l)) if 'global_store_dword v2, v3' not in l and 'v_mov_b32 v2, s41' not in l and not re.match(r'\s*v_mov_b32 v3, s\d+', l) else l for l in aux[i0:]]
    g.L = pro + aux + strm + ['L_codeend:']
    head = open('recurrent_scan__sliding_block_cached__mixer_channel_mlp__decode.s.ref').read().split('; Override launch')[0]
    src = head + f'''; Generated by a hand-written generator script (see header notes below).
; One workgroup per (head, 256-key split); wave 0 = projection/MLP helper, waves 1-4 stream K/V.
; @launch grid=(256,1,1) block=(320,1,1) lds={LDS_BYTES}
.amdgcn_target "amdgcn-amd-amdhsa--gfx950"
.text
.globl {KN}
.p2align 8
.type {KN},@function
{KN}:
''' + '\n'.join(g.L) + f'''
.section .rodata,"a"
.p2align 6
.amdhsa_kernel {KN}
  .amdhsa_next_free_vgpr 232
  .amdhsa_next_free_sgpr 96
  .amdhsa_accum_offset 232
  .amdhsa_group_segment_fixed_size 0
  .amdhsa_kernarg_size 104
  .amdhsa_user_sgpr_count 2
  .amdhsa_user_sgpr_kernarg_segment_ptr 1
  .amdhsa_system_sgpr_workgroup_id_x 1
  .amdhsa_float_denorm_mode_32 3
.end_amdhsa_kernel
'''
    return src


if __name__ == '__main__':
    out = sys.argv[1]
    opt = eval(sys.argv[2]) if len(sys.argv) > 2 else {}
    open(out, 'w').write(gen(opt))
```

```python
import sys, struct

KN = 'recurrent_scan__sliding_block_cached__mixer_channel_mlp__decode_kernel'

def f2u(x):
    return struct.unpack('<I', struct.pack('<f', x))[0]

LOG2E = 1.4426950408889634
WS_Q = 0x10000
WS_Z = 0x60000
WS_O = 0xB0000
WS_Y = 0x100000
WS_B = 0x140000
WS_X = 0x8000
WS_ST = 0x200000
L_Q = 0; L_ZERO = 256; L_MAX = 272; L_SUM = 288; L_FLAG = 304; L_O = 512; L_Y = 2560; LDS_BYTES = 8192
DPPF = 'row_mask:0xf bank_mask:0xf'
SPIN = 100000

DEFAULTS = dict(diag=0, nt=1, wnt=1, warm=1, loc=1, b0=4.5, b1=3, sched=(8, 8, 0, 1), thr2=12, sp=(2, 2, 3), gap=1, b3b=1,
                pure=0, kvmap=0, qlin=1, mergez=1, shrink=1, sleep1=0, skip='', ytouch=1, probe=None, lin=0, outf='', map=0, spthr=0)


class G:
    def __init__(self, opt):
        self.L = []
        self.o = opt

    def __call__(self, s):
        for line in s.strip('\n').split('\n'):
            line = line.strip()
            if not line:
                continue
            self.L.append(line if line.endswith(':') else '    ' + line)

    def take(self):
        L, self.L = self.L, []
        return L

    def stamp(self, i):
        if self.o['diag']:
            self(f's_memrealtime s[{60 + 2 * i}:{61 + 2 * i}]')

    def stamp_out(self, n, wave):
        if not self.o['diag']:
            return
        self(f'''
        s_waitcnt lgkmcnt(0)
        s_lshl_b32 s41, s2, 3
        s_add_u32 s41, s41, {wave}
        s_lshl_b32 s41, s41, 7
        s_add_u32 s41, s41, {WS_ST}
        s_mov_b64 exec, 0xffff
        v_lshl_add_u32 v2, v1, 2, s41
        ''')
        for i in range(n):
            self(f'v_writelane_b32 v3, s{60 + 2 * i}, {i}')
        self('global_store_dword v2, v3, s[32:33]')


def wave_sum(g, regs, op='v_add_f32'):
    pad = max(0, 2 - (len(regs) - 1))
    for ctl in ('row_ror:1 ' + DPPF, 'row_ror:2 ' + DPPF, 'row_ror:4 ' + DPPF, 'row_ror:8 ' + DPPF,
                'row_bcast:15 row_mask:0xa bank_mask:0xf', 'row_bcast:31 row_mask:0xc bank_mask:0xf'):
        if pad:
            g(f's_nop {pad - 1}')
        for r in regs:
            g(f'{op}_dpp {r}, {r}, {r} {ctl}')


def bf_round(g, dst, src):
    g(f'v_cvt_pk_bf16_f32 {dst}, {src}, {src}')
    g(f'v_and_b32 {dst}, 0xffff0000, {dst}')


def layernorm_stats(g, e, t0, t1, smean, vmeanb, vrinv):
    g(f'''
    v_add_f32 {t0}, {e[0]}, {e[1]}
    v_add_f32 {t1}, {e[2]}, {e[3]}
    v_add_f32 {t0}, {t0}, {e[4]}
    v_add_f32 {t1}, {t1}, {e[5]}
    v_add_f32 {t0}, {t0}, {e[6]}
    v_add_f32 {t1}, {t1}, {e[7]}
    v_add_f32 {t0}, {t0}, {t1}
    ''')
    wave_sum(g, [t0])
    g(f'''
    v_mul_f32 {t0}, {hex(f2u(1.0 / 512))}, {t0}
    s_nop 0
    v_readlane_b32 {smean}, {t0}, 63
    s_nop 1
    v_subrev_f32 {t0}, {smean}, {e[0]}
    v_subrev_f32 {vmeanb}, {smean}, {e[1]}
    v_mul_f32 {t0}, {t0}, {t0}
    v_mul_f32 {t1}, {vmeanb}, {vmeanb}
    ''')
    for i in range(2, 8, 2):
        g(f'''
        v_subrev_f32 {vrinv}, {smean}, {e[i]}
        v_subrev_f32 {vmeanb}, {smean}, {e[i + 1]}
        v_fmac_f32 {t0}, {vrinv}, {vrinv}
        v_fmac_f32 {t1}, {vmeanb}, {vmeanb}
        ''')
    g(f'v_add_f32 {t0}, {t0}, {t1}')
    g(f'v_mov_b32 {vmeanb}, {smean}')
    wave_sum(g, [t0])
    g(f'v_mul_f32 {t0}, {hex(f2u(1.0 / 512))}, {t0}')
    bf_round(g, vmeanb, vmeanb)
    g(f'v_readlane_b32 {smean}, {t0}, 63')
    g('s_nop 1')
    g(f'v_mov_b32 {t0}, {smean}')
    bf_round(g, t0, t0)
    g(f'v_add_f32 {t0}, {hex(f2u(1e-5))}, {t0}')
    bf_round(g, t0, t0)
    g(f'v_sqrt_f32 {t0}, {t0}')
    g('s_nop 0')
    bf_round(g, t0, t0)
    g(f'v_rcp_f32 {vrinv}, {t0}')
    g('s_nop 0')


def masks(g, M4, M8, t0, t1):
    g(f'''
    v_and_b32 {t0}, 1, v1
    v_lshlrev_b32 {t0}, 4, {t0}
    v_mov_b32 {t1}, 0xffff
    v_lshlrev_b32 {t0}, {t0}, {t1}
    v_bfe_u32 {t1}, v1, 1, 2
    ''')
    for j in range(4):
        g(f'v_cmp_eq_u32 s[{44 + 2 * j}:{45 + 2 * j}], {j}, {t1}')
        g(f'v_mov_b32 v{M4 + j}, 0')
    for j in range(4):
        g(f'v_mov_b32_dpp v{M4 + j}, {t0} quad_perm:[0,1,2,3] row_mask:0xf bank_mask:{hex(1 << j)}')
        g(f'v_cndmask_b32 v{M8 + j}, 0, {t0}, s[{44 + 2 * j}:{45 + 2 * j}]')


def mfma(d, a, b, first):
    c = '0' if first else f'v[{d}:{d + 3}]'
    return f'v_mfma_f32_16x16x32_bf16 v[{d}:{d + 3}], v[{a}:{a + 3}], v[{b}:{b + 3}], {c}'


M4 = 192; M8 = 196


def gen_stream(g, o):
    NT = 'nt' if o['nt'] else ''
    WNT = 'nt' if o['wnt'] else ''
    WARM = o['warm']
    KR = 16; VR = 80; WO = 144; QB = 160; DT = 176; OA = 220; YA = 224
    nskip = [0]

    def wskip():
        if not WARM:
            return ''
        nskip[0] += 1
        g(f's_cbranch_execz L_ws{nskip[0]}')
        return f'L_ws{nskip[0]}:'
    g(f'''
    L_stream:
    ''')
    KV = o['kvmap']
    if KV == 0:
        TSH = 12
        g('''
        s_lshl_b32 s7, s4, 21
        s_lshl_b32 s35, s5, 16
        s_add_u32 s7, s7, s35
        s_lshl_b32 s35, s3, 8
        s_add_u32 s7, s7, s35
        s_and_b32 s35, s2, 24
        s_lshl_b32 s35, s35, 9
        s_add_u32 s7, s7, s35
        s_add_u32 s7, s7, 0x17c000
        ''')
    elif KV in (1, 2):
        TSH = 17
        g('''
        s_lshl_b32 s7, s4, 21
        s_lshl_b32 s35, s5, 14
        s_add_u32 s7, s7, s35
        s_lshl_b32 s35, s3, 6
        s_add_u32 s7, s7, s35
        s_add_u32 s7, s7, 0x17f000
        ''')
        if KV == 2:
            g('s_and_b32 s35, s2, 24\ns_lshl_b32 s35, s35, 14\ns_add_u32 s7, s7, s35')
    elif KV in (3, 4):
        TSH = 14
        g('''
        s_lshl_b32 s7, s4, 21
        s_lshl_b32 s35, s5, 16
        s_add_u32 s7, s7, s35
        s_lshl_b32 s35, s3, 6
        s_add_u32 s7, s7, s35
        s_add_u32 s7, s7, 0x17f000
        ''')
        if KV == 3:
            g('s_and_b32 s35, s2, 24\ns_lshl_b32 s35, s35, 11\ns_add_u32 s7, s7, s35')
        else:
            g('s_and_b32 s35, s5, 3\ns_lshl_b32 s35, s35, 14\ns_add_u32 s7, s7, s35')
    g(f'''
    v_lshlrev_b32 v2, 4, v1
    v_and_b32 v3, 0x30, v2
    v_and_b32 v4, 0xc0, v2
    v_lshl_or_b32 v3, v4, 2, v3
    v_lshrrev_b32 v4, 4, v1
    v_lshl_or_b32 v3, v4, 6, v3
    v_add_u32 v{KR + 12}, s7, v3
    v_add_u32 v{VR + 12}, s7, v2
    ''')
    for T in range(1, 4):
        g(f'v_xor_b32 v{KR + 16 * T + 12}, {hex(T << TSH)}, v{KR + 12}')
    for T in range(1, 4):
        g(f'v_xor_b32 v{VR + 16 * T + 12}, {hex(T << TSH)}, v{VR + 12}')
    g(f'''
    s_lshr_b32 s6, s3, 6
    s_sub_u32 s6, s6, 1
    s_and_b32 s35, s4, 3
    s_lshl_b32 s35, s35, 5
    s_lshl_b32 s37, s5, 7
    s_add_u32 s35, s35, s37
    v_and_b32 v5, 7, v1
    v_and_b32 v6, 1, v4
    v_lshlrev_b32 v6, 1, v6
    v_lshl_or_b32 v6, v5, 2, v6
    v_add_u32 v204, s35, v6
    v_lshrrev_b32 v9, 3, v1
    s_lshl_b32 s35, s5, 14
    s_and_b32 s38, s4, 3
    s_lshl_b32 s38, s38, 7
    s_add_u32 s35, s35, s38
    s_add_u32 s35, s35, {WS_B + 4096}
    v_lshlrev_b32 v8, 9, v9
    v_lshl_or_b32 v8, v5, 4, v8
    v_add_u32 v211, s35, v8
    v_add_u32 v212, 0x2000, v211
    v_add_u32 v218, {hex((WS_Y - WS_B) & 0xffffffff)}, v211
    v_add_u32 v219, 0x2000, v218
    s_lshr_b32 s35, s4, 2
    s_cmp_eq_u32 s35, s5
    s_cselect_b32 s53, s6, 0
    s_cmp_eq_u32 s53, 1
    s_waitcnt lgkmcnt(0)
    s_load_dword s34, s[32:33], 0
    s_cbranch_scc0 L_nosmall
    global_load_ushort v214, v204, s[8:9]
    global_load_ushort v215, v204, s[26:27]
    global_load_ushort v216, v204, s[28:29]
    ''')
    if o['ytouch']:
        f = {1: '', 2: 'sc1', 3: 'nt'}[o['ytouch']]
        g(f'''
        global_load_dword v216, v218, s[32:33] offset:-4096 {f}
        global_load_dword v216, v218, s[32:33] {f}
        global_load_dword v216, v219, s[32:33] offset:-4096 {f}
        global_load_dword v216, v219, s[32:33] {f}
        ''')
    g(f'''
    L_nosmall:
    s_barrier
    ''')
    g.stamp(1)
    n = [0]
    fixed = [None]

    def vload(txt):
        w0, w1, i0, i1 = o['sched']
        x = min(1.0, max(0.0, (n[0] - i0) / float(i1 - i0)))
        thr = fixed[0] or int(round(w0 + (w1 - w0) * x))
        if n[0] >= thr:
            g(f's_waitcnt vmcnt({thr - 1})')
        elif n[0] > 0 and o['gap']:
            g('s_nop 0')
        g(txt)
        n[0] += 1

    def tile(base, T, sp):
        return [f'global_load_dwordx4 v[{base + 16 * T + 4 * i}:{base + 16 * T + 4 * i + 3}], v{base + 16 * T + 12}, {sp} offset:{1024 * i} {NT}' for i in range(4)]
    seq = []
    for T in range(4):
        seq += tile(KR, T, 's[10:11]')
    for T in range(4):
        seq += tile(VR, T, 's[12:13]')
    seq += [f'global_load_dwordx4 v[{WO + 4 * j}:{WO + 4 * j + 3}], v{WO + 12}, s[16:17] offset:{1024 * j} {WNT}' for j in range(4)]
    NB0 = int(round(4 * o['b0'])); NB1 = int(round(16 + 4 * o['b1']))
    NFIRST = min(8, int(o['sched'][0]))
    for l in seq[:NFIRST]:
        vload(l)
    g.stamp(2)
    masks(g, M4, M8, 'v7', 'v6')
    g(f'''
    v_and_b32 v7, 0x30, v2
    v_lshl_or_b32 v7, v4, 6, v7
    ''')
    for t in range(4):
        g(f'v_mov_b32 v{200 + t}, {L_ZERO}')
    for t in range(4):
        g(f'v_mov_b32_dpp v{200 + t}, v7 quad_perm:[0,1,2,3] row_mask:0xf bank_mask:{hex(1 << t)}')
    g(f'''
    s_lshl_b32 s36, s4, 3
    s_add_u32 s36, s36, s5
    s_lshl_b32 s36, s36, 10
    s_lshl_b32 s35, s4, 17
    s_add_u32 s35, s35, s37
    s_lshl_b32 s38, s6, 15
    s_add_u32 s35, s35, s38
    v_bfe_u32 v6, v1, 3, 1
    v_lshlrev_b32 v7, 13, v4
    v_lshl_or_b32 v7, v6, 12, v7
    v_lshl_or_b32 v7, v5, 4, v7
    v_add_u32 v{WO + 12}, s35, v7
    s_lshl_b32 s35, s4, 13
    s_lshl_b32 s38, s6, 8
    s_add_u32 s35, s35, s38
    s_add_u32 s35, s35, {WS_O}
    v_lshlrev_b32 v7, 10, v5
    v_lshl_or_b32 v7, v4, 6, v7
    v_lshl_or_b32 v7, v6, 5, v7
    v_add_u32 v205, s35, v7
    v_and_b32 v7, 15, v1
    v_lshlrev_b32 v8, 6, v7
    v_lshl_or_b32 v8, v4, 4, v8
    s_add_u32 s35, s36, {WS_O}
    v_add_u32 v206, s35, v8
    s_lshl_b32 s35, s6, 9
    s_add_u32 s35, s35, {L_O}
    v_lshl_add_u32 v207, v1, 3, s35
    s_mul_i32 s35, s6, 1280
    s_add_u32 s35, s35, {L_Y}
    v_mul_u32_u24 v8, 320, v4
    v_lshl_add_u32 v8, v7, 4, v8
    v_add_u32 v208, s35, v8
    v_bfe_u32 v8, v1, 2, 1
    v_mul_u32_u24 v8, 320, v8
    v_lshrrev_b32 v9, 3, v1
    v_lshl_add_u32 v8, v9, 4, v8
    v_and_b32 v10, 3, v1
    v_lshl_add_u32 v8, v10, 2, v8
    v_add_u32 v209, {L_Y}, v8
    s_lshl_b32 s35, s5, 5
    s_add_u32 s35, s35, s4
    s_lshl_b32 s35, s35, 9
    s_add_u32 s35, s35, {WS_Y}
    v_lshl_add_u32 v210, v1, 3, s35
    s_lshl_b32 s39, s6, 2
    v_mov_b32 v213, s39
    v_and_b32 v8, 1, v4
    v_cmp_eq_u32 s[42:43], 1, v8
    s_mov_b32 s40, {SPIN}
    s_waitcnt lgkmcnt(0)
    s_add_u32 s34, s34, 0x01010101
    ''')
    g.stamp(3)
    for i in range(NFIRST, NB1):
        vload(seq[i])
        if i + 1 == NB0:
            g('s_barrier')
            fixed[0] = o['thr2']
    rest = seq[NB1:]
    if o['pure']:
        for l in rest:
            vload(l)
        g.stamp(4)
        g('s_waitcnt vmcnt(4)')
        for i in (5, 6, 7, 11): g.stamp(i)
        g('s_waitcnt vmcnt(0)')
        for i in (8, 9, 10): g.stamp(i)
        g('s_add_u32 s6, s6, 1')
        g.stamp_out(13, 's6')
        g('s_endpgm')

    def sprinkle(k):
        k = min(k, len(rest))
        if k == 0:
            return
        lab = wskip()
        for _ in range(k):
            if o['spthr']:
                g(f's_waitcnt vmcnt({o["spthr"] - 1})')
            g(rest.pop(0))
        g(lab)
    g.stamp(4)
    g('s_barrier')
    g.stamp(5)
    g('L_warm1:')
    for t in range(4):
        g(f'ds_read_b128 v[{QB + 4 * t}:{QB + 4 * t + 3}], v{200 + t}')
    g(f'''
    v_mov_b32 v13, 0
    ds_read_b32 v13, v13 offset:{L_FLAG}
    s_waitcnt vmcnt({NB1 - 16}) lgkmcnt(0)
    ''')
    for tp in range(4):
        for T in range(4):
            g(mfma(DT + 4 * T, KR + 16 * T + 4 * tp, QB + 4 * tp, tp == 0))
    g('v_readfirstlane_b32 s52, v13')
    sprinkle(o['sp'][0])
    g('s_nop 3')
    for r in range(4):
        for T in range(4):
            if r == 0:
                g(f'v_mov_b32_dpp v{8 + T}, v{DT + 4 * T} quad_perm:[0,0,0,0] {DPPF}')
            else:
                g(f'v_add_f32_dpp v{8 + T}, v{DT + 4 * T + r}, v{8 + T} quad_perm:[{r},{r},{r},{r}] {DPPF}')
    sc = hex(f2u(128 ** -0.5))
    g(f'''
    v_cvt_pk_bf16_f32 v12, v8, v9
    v_cvt_pk_bf16_f32 v13, v10, v11
    v_lshlrev_b32 v8, 16, v12
    v_and_b32 v9, 0xffff0000, v12
    v_lshlrev_b32 v10, 16, v13
    v_and_b32 v11, 0xffff0000, v13
    v_mul_f32 v8, {sc}, v8
    v_mul_f32 v9, {sc}, v9
    v_mul_f32 v10, {sc}, v10
    v_mul_f32 v11, {sc}, v11
    v_cvt_pk_bf16_f32 v12, v8, v9
    v_cvt_pk_bf16_f32 v13, v10, v11
    v_lshlrev_b32 v8, 16, v12
    v_and_b32 v9, 0xffff0000, v12
    v_lshlrev_b32 v10, 16, v13
    v_and_b32 v11, 0xffff0000, v13
    v_max_f32 v12, v8, v9
    v_max3_f32 v12, v10, v11, v12
    s_nop 1
    v_max_f32_dpp v12, v12, v12 row_ror:4 {DPPF}
    s_nop 1
    v_max_f32_dpp v12, v12, v12 row_ror:8 {DPPF}
    s_nop 1
    v_max_f32_dpp v12, v12, v12 row_bcast:15 row_mask:0xa bank_mask:0xf
    s_nop 1
    v_max_f32_dpp v12, v12, v12 row_bcast:31 row_mask:0xc bank_mask:0xf
    s_nop 0
    v_readlane_b32 s35, v12, 63
    v_mov_b32 v13, 0
    s_nop 0
    v_mov_b32 v12, s35
    ds_write_b32 v213, v12 offset:{L_MAX}
    ''')
    lab = wskip()
    for _ in range(min(o['sp'][1], len(rest))):
        if o['spthr']:
            g(f's_waitcnt vmcnt({o["spthr"] - 1})')
        g(rest.pop(0))
    g(f'''
    s_waitcnt lgkmcnt(0)
    s_barrier
    {lab}
    ds_read_b128 v[176:179], v13 offset:{L_MAX}
    s_mov_b32 s35, {hex(f2u(LOG2E))}
    s_waitcnt lgkmcnt(0)
    v_max_f32 v12, v176, v177
    v_max3_f32 v12, v178, v179, v12
    v_mul_f32 v217, s35, v12
    v_fma_f32 v8, v8, s35, -v217
    v_fma_f32 v9, v9, s35, -v217
    v_fma_f32 v10, v10, s35, -v217
    v_fma_f32 v11, v11, s35, -v217
    v_exp_f32 v8, v8
    v_exp_f32 v9, v9
    v_exp_f32 v10, v10
    v_exp_f32 v11, v11
    ''')
    sprinkle(o['sp'][2])
    g(f'''
    s_nop 0
    v_add_f32 v12, v8, v9
    v_add_f32 v13, v10, v11
    v_cvt_pk_bf16_f32 v8, v8, v8
    v_add_f32 v12, v12, v13
    v_cvt_pk_bf16_f32 v9, v9, v9
    v_cvt_pk_bf16_f32 v10, v10, v10
    v_add_f32_dpp v12, v12, v12 row_ror:4 {DPPF}
    v_cvt_pk_bf16_f32 v11, v11, v11
    ''')
    thread = [f'v_add_f32_dpp v12, v12, v12 row_ror:8 {DPPF}',
              'v_add_f32_dpp v12, v12, v12 row_bcast:15 row_mask:0xa bank_mask:0xf',
              'v_add_f32_dpp v12, v12, v12 row_bcast:31 row_mask:0xc bank_mask:0xf',
              'v_readlane_b32 s35, v12, 63',
              'v_mov_b32 v12, s35',
              f'ds_write_b32 v213, v12 offset:{L_SUM}']
    for t in range(16):
        for j in range(4):
            g(f'v_and_b32_dpp v{KR + 4 * t + j}, v{8 + t // 4}, v{M4 + j} row_newbcast:{4 * (t % 4)} {DPPF}')
        if t < len(thread):
            g(thread[t])
        if t == 7:
            sprinkle((len(rest) + 1) // 2)
    sprinkle(99)
    g.stamp(6)
    for t in range(16):
        if t in (0, 4, 8):
            g(f's_waitcnt vmcnt({19 - (t + 3)})')
        elif t >= 12:
            g(f's_waitcnt vmcnt({19 - t})')
        g(mfma(OA, KR + 4 * t, VR + 4 * t, t == 0))
    g.stamp(7)
    g(f'''
    s_cmp_eq_u32 s6, 0
    v_mov_b32 v13, 0
    s_nop 5
    ds_write_b64 v207, v[{OA}:{OA + 1}]
    s_waitcnt lgkmcnt(0)
    s_barrier
    ''')
    g.stamp(11)
    g(f'''
    s_cbranch_scc0 L_pub1
    {'s_waitcnt lgkmcnt(0)' if o['diag'] else ''}
    ds_read2st64_b64 v[176:179], v207 offset0:1 offset1:2
    ds_read_b64 v[180:181], v207 offset:1536
    ds_read_b128 v[184:187], v13 offset:{L_SUM}
    v_mov_b32 v{OA + 2}, s34
    s_cmp_eq_u32 s52, {0 if o['loc'] else -1}
    s_waitcnt lgkmcnt(2)
    v_pk_add_f32 v[{OA}:{OA + 1}], v[{OA}:{OA + 1}], v[176:177]
    s_waitcnt lgkmcnt(1)
    v_pk_add_f32 v[178:179], v[178:179], v[180:181]
    s_waitcnt lgkmcnt(0)
    v_pk_add_f32 v[184:185], v[184:185], v[186:187]
    v_pk_add_f32 v[{OA}:{OA + 1}], v[{OA}:{OA + 1}], v[178:179]
    v_add_f32 v184, v184, v185
    ''')
    lab = wskip()
    g(f'''
    v_cndmask_b32 v{OA + 3}, v217, v184, s[42:43]
    s_cbranch_scc0 L_farpub
    global_store_dwordx4 v206, v[{OA}:{OA + 3}], s[32:33]
    L_pub1:
    s_cmp_eq_u32 s53, 1
    s_cbranch_scc0 L_nob
    global_load_dwordx4 v[228:231], v211, s[32:33] offset:-4096 sc1
    global_load_dwordx4 v[232:235], v211, s[32:33] sc1
    global_load_dwordx4 v[236:239], v212, s[32:33] offset:-4096 sc1
    global_load_dwordx4 v[240:243], v212, s[32:33] sc1
    L_nob:
    {'s_barrier' if o['b3b'] else ''}
    {'s_branch L_poll1' if o['sleep1'] else ''}
    L_again1:
    {f's_sleep {o["sleep1"]}' if o['sleep1'] else ''}
    L_poll1:
    global_load_dwordx4 v[176:179], v205, s[32:33] sc1
    global_load_dwordx4 v[180:183], v205, s[32:33] offset:16 sc1
    s_sub_u32 s40, s40, 1
    s_cbranch_scc1 L_end
    s_waitcnt vmcnt(0)
    v_bitop3_b32 v8, v178, v182, s34 bitop3:0x7e
    v_cmp_ne_u32 vcc, 0, v8
    ''')
    if o['shrink']:
        g('''
        s_and_b64 exec, vcc, vcc
        s_cbranch_scc1 L_again1
        s_mov_b64 exec, -1
        ''')
    else:
        g('s_cbranch_vccnz L_again1')
    g(f'''
    {lab}
    ''')
    g.stamp(8)
    if o['diag']:
        g(f's_sub_u32 s84, {SPIN}, s40')
    g(f'''
    v_max_f32_dpp v8, v179, v179 quad_perm:[1,0,3,2] {DPPF}
    s_nop 1
    v_max_f32_dpp v8, v8, v8 quad_perm:[2,3,0,1] {DPPF}
    s_nop 1
    v_max_f32_dpp v8, v8, v8 row_half_mirror {DPPF}
    v_sub_f32 v8, v179, v8
    v_exp_f32 v8, v8
    s_cmp_eq_u32 s6, 0
    v_mul_f32 v183, v8, v183
    v_mul_f32 v176, v8, v176
    v_mul_f32 v177, v8, v177
    v_mul_f32 v180, v8, v180
    v_mul_f32 v181, v8, v181
    ''')
    for ctl in ('quad_perm:[1,0,3,2]', 'quad_perm:[2,3,0,1]', 'row_half_mirror'):
        for r in (183, 176, 177, 180, 181):
            g(f'v_add_f32_dpp v{r}, v{r}, v{r} {ctl} {DPPF}')
    g('v_rcp_f32 v183, v183')
    g('v_mov_b32 v9, s34')
    src = (176, 177, 180, 181)
    for j in range(4):
        g(f'v_mul_f32 v{src[j]}, v183, v{src[j]}')
    for j in range(4):
        g(f'v_cvt_pk_bf16_f32 v{src[j]}, v{src[j]}, v{src[j]}')
    for j in range(5):
        if j < 4:
            for jj in range(4):
                g(f'v_and_b32 v{KR + 4 * j + jj}, v{src[j]}, v{M8 + jj}')
        else:
            g('s_nop 0')
        if j >= 1:
            g(mfma(YA, KR + 4 * (j - 1), WO + 4 * (j - 1), j == 1))
    lab = wskip()
    g(f'''
    s_nop {6 if WARM else 7}
    ds_write_b128 v208, v[{YA}:{YA + 3}]
    s_waitcnt lgkmcnt(0)
    s_barrier
    s_cbranch_scc0 L_notw0
    {lab}
    ''')
    for w in range(4):
        g(f'ds_read_b32 v{176 + 2 * w}, v209 offset:{1280 * w}')
        g(f'ds_read_b32 v{177 + 2 * w}, v209 offset:{1280 * w + 768}')
    if WARM:
        g('s_cbranch_execz L_warm2')
    g(f'''
    s_waitcnt lgkmcnt(4)
    v_pk_add_f32 v[176:177], v[176:177], v[178:179]
    s_waitcnt lgkmcnt(0)
    v_pk_add_f32 v[180:181], v[180:181], v[182:183]
    v_pk_add_f32 v[176:177], v[176:177], v[180:181]
    v_add_f32 v8, v176, v177
    global_store_dwordx2 v210, v[8:9], s[32:33] sc1
    ''')
    g.stamp(9)
    g.stamp_out(13, '1')
    g('s_endpgm')
    g('L_notw0:')
    g.stamp(9)
    g(f'''
    s_cmp_eq_u32 s53, 1
    s_cbranch_scc0 L_done
    L_warm2:
    ''')

    def yloads():
        g('''
        global_load_dwordx4 v[176:179], v218, s[32:33] offset:-4096 sc1
        global_load_dwordx4 v[180:183], v218, s[32:33] sc1
        global_load_dwordx4 v[184:187], v219, s[32:33] offset:-4096 sc1
        global_load_dwordx4 v[188:191], v219, s[32:33] sc1
        ''')

    def fold(r, lab, waits):
        g(f'''
        {'s_waitcnt vmcnt(2)' if waits else ''}
        v_bitop3_b32 v8, v{r + 1}, v{r + 3}, s34 bitop3:0x7e
        v_bitop3_b32 v9, v{r + 5}, v{r + 7}, s34 bitop3:0x7e
        v_add_f32 v{r}, v{r}, v{r + 4}
        v_add_f32 v{r + 2}, v{r + 2}, v{r + 6}
        {'s_waitcnt vmcnt(0)' if waits else ''}
        v_bitop3_b32 v10, v{r + 9}, v{r + 11}, s34 bitop3:0x7e
        v_bitop3_b32 v11, v{r + 13}, v{r + 15}, s34 bitop3:0x7e
        v_or3_b32 v8, v8, v9, v10
        v_or_b32 v8, v8, v11
        v_cmp_ne_u32 vcc, 0, v8
        v_add_f32 v{r + 8}, v{r + 8}, v{r + 12}
        v_add_f32 v{r + 10}, v{r + 10}, v{r + 14}
        v_add_f32 v{r}, v{r}, v{r + 8}
        v_add_f32 v{r + 2}, v{r + 2}, v{r + 10}
        s_cbranch_vccnz {lab}
        v_add_f32_dpp v{r}, v{r}, v{r} row_ror:8 {DPPF}
        v_add_f32_dpp v{r + 2}, v{r + 2}, v{r + 2} row_ror:8 {DPPF}
        s_nop 1
        v_permlane16_swap_b32 v{r}, v{r + 2}
        v_add_f32 v{r}, v{r}, v{r + 2}
        v_mov_b32 v{r + 2}, v{r}
        s_nop 1
        v_permlane32_swap_b32 v{r}, v{r + 2}
        v_add_f32 v{r}, v{r}, v{r + 2}
        v_cvt_pk_bf16_f32 v{r}, v{r}, v{r}
        v_and_b32 v{r}, 0xffff0000, v{r}
        ''')
    lab = wskip()
    yloads()
    g(lab)
    g('''
    v_lshlrev_b32 v214, 16, v214
    v_lshlrev_b32 v215, 16, v215
    L_chkb:
    ''')
    fold(228, 'L_retryb', False)
    g(f'''
    v_add_f32 v228, v228, v215
    v_cvt_pk_bf16_f32 v228, v228, v228
    v_and_b32 v228, 0xffff0000, v228
    v_mul_f32 v8, {hex(f2u(-LOG2E))}, v228
    v_exp_f32 v8, v8
    s_nop 0
    v_add_f32 v8, 1.0, v8
    v_rcp_f32 v8, v8
    s_nop 0
    v_mul_f32 v215, v228, v8
    v_cvt_pk_bf16_f32 v215, v215, v215
    v_and_b32 v215, 0xffff0000, v215
    s_branch L_chky
    L_poll2:
    ''')
    yloads()
    g('''
    s_sub_u32 s40, s40, 1
    s_cbranch_scc1 L_end
    L_chky:
    ''')
    fold(176, 'L_poll2', True)
    g(f'''
    v_mul_f32 v176, v176, v215
    v_cvt_pk_bf16_f32 v176, v176, v176
    v_and_b32 v176, 0xffff0000, v176
    v_add_f32 v176, v176, v214
    {'s_cbranch_execz L_warm3' if WARM else ''}
    v_cvt_pk_bf16_f32 v176, v176, v176
    s_mov_b64 exec, 0x00ff00ff
    global_store_short v204, v176, s[28:29] {o['outf']}
    s_cmp_eq_u32 s2, 0
    s_cbranch_scc0 L_done
    v_mov_b32 v8, 0
    v_mov_b32 v9, s34
    s_mov_b64 exec, 1
    global_store_dword v8, v9, s[32:33] {o.get('epf', '')}
    L_done:
    ''')
    g.stamp(10)
    if o['diag']:
        g('s_add_u32 s6, s6, 1')
    g.stamp_out(13, 's6')
    if o['probe']:
        probe(g, o)
    g(f'''
    L_end:
    s_endpgm
    L_retryb:
    global_load_dwordx4 v[228:231], v211, s[32:33] offset:-4096 sc1
    global_load_dwordx4 v[232:235], v211, s[32:33] sc1
    global_load_dwordx4 v[236:239], v212, s[32:33] offset:-4096 sc1
    global_load_dwordx4 v[240:243], v212, s[32:33] sc1
    s_sub_u32 s40, s40, 1
    s_cbranch_scc1 L_end
    s_waitcnt vmcnt(0)
    s_branch L_chkb
    L_farpub:
    global_store_dwordx4 v206, v[{OA}:{OA + 3}], s[32:33] sc1
    s_branch L_pub1
    ''')


def probe(g, o):
    wv, idx, kind, K = o['probe']
    mm = 'v_max_u32' if kind == 'max' else 'v_min_u32'
    g(f'''
    s_cmp_eq_u32 s2, 0
    s_cbranch_scc0 L_end
    s_cmp_eq_u32 s6, 2
    s_cbranch_scc0 L_end
    s_mov_b64 exec, -1
    s_memrealtime s[50:51]
    s_waitcnt lgkmcnt(0)
    L_pw:
    s_memrealtime s[52:53]
    s_waitcnt lgkmcnt(0)
    s_sub_u32 s52, s52, s50
    s_cmp_lt_u32 s52, 300
    s_cbranch_scc1 L_pw
    v_lshlrev_b32 v2, 10, v1
    v_add_u32 v2, {WS_ST}, v2
    ''')
    for i in range(4):
        g(f'global_load_dword v{8 + i}, v2, s[32:33] sc1')
        g(f'global_load_dword v{12 + i}, v2, s[32:33] offset:{wv * 128 + idx * 4} sc1')
        g('v_add_u32 v2, 0x10000, v2')
    g(f'''
    s_waitcnt vmcnt(0)
    v_min_u32 v8, v8, v9
    v_min_u32 v10, v10, v11
    v_min_u32 v8, v8, v10
    {mm} v12, v12, v13
    {mm} v14, v14, v15
    {mm} v12, v12, v14
    ''')
    wave_sum(g, ['v8'], 'v_min_u32')
    wave_sum(g, ['v12'], mm)
    g(f'''
    s_nop 1
    v_readlane_b32 s52, v8, 63
    v_readlane_b32 s53, v12, 63
    s_nop 3
    s_sub_u32 s54, s53, s52
    s_min_u32 s54, s54, 3000
    s_mul_i32 s54, s54, {K}
    s_add_u32 s54, s54, 400
    L_pw2:
    s_memrealtime s[52:53]
    s_waitcnt lgkmcnt(0)
    s_sub_u32 s52, s52, s50
    s_cmp_lt_u32 s52, s54
    s_cbranch_scc1 L_pw2
    ''')


def gen_aux(g, o):
    WNT = 'nt' if o['wnt'] else ''
    WARM = o['warm']
    WQ = 16; W1 = 80; W2 = 144; E = [f'v{168 + i}' for i in range(8)]; AS = (176, 180); QA = 184; ZA = 188
    g(f'''
    L_aux:
    s_setprio 3
    {'s_lshr_b32 s58, s2, 3' if o['qlin'] else 's_mov_b32 s58, s4'}
    {'s_and_b32 s59, s2, 7' if o['qlin'] else 's_mov_b32 s59, s5'}
    v_and_b32 v2, 15, v1
    v_lshrrev_b32 v3, 4, v1
    v_lshlrev_b32 v10, 4, v1
    s_lshl_b32 s6, s59, 7
    v_lshlrev_b32 v11, 1, v3
    v_lshl_or_b32 v11, v2, 3, v11
    v_add_u32 v8, s6, v11
    s_lshl_b32 s7, s59, 19
    s_lshl_b32 s35, s58, 8
    s_add_u32 s7, s7, s35
    v_lshlrev_b32 v12, 4, v2
    v_lshl_or_b32 v13, v3, 13, v12
    v_add_u32 v{WQ}, s7, v13
    s_mov_b32 s38, 0x8000
    s_waitcnt lgkmcnt(0)
    ''')
    g.stamp(1)
    g('''
    global_load_dwordx4 v[4:7], v10, s[8:9]
    global_load_ushort v8, v8, s[8:9]
    s_load_dword s34, s[32:33], 0
    ''')
    for t in range(16):
        r = WQ + 4 * t
        if t < 15:
            g(f'v_add_u32 v{r + 4}, s38, v{r}')
        g(f'global_load_dwordx4 v[{r}:{r + 3}], v{r}, s[14:15] {WNT}')
    g(f'''
    ''')
    if o['qlin']:
        g(f'''
        s_mul_i32 s35, s58, 43
        s_lshr_b32 s35, s35, 3
        s_lshl_b32 s35, s35, 4
        s_mul_i32 s7, s59, {64 * 2752}
        s_add_u32 s7, s7, s35
        s_mul_i32 s36, s4, 43
        s_add_u32 s37, s36, 43
        s_lshr_b32 s36, s36, 3
        s_lshr_b32 s37, s37, 3
        s_sub_u32 s37, s37, s36
        s_lshl_b32 s35, s36, 4
        s_lshl_b32 s6, s5, 7
        ''')
    else:
        g(f'''
    s_and_b32 s36, s4, 7
    s_lshr_b32 s37, s4, 3
    s_lshl2_add_u32 s36, s36, s37
    s_mul_i32 s36, s36, 43
    s_add_u32 s37, s36, 43
    s_lshr_b32 s36, s36, 3
    s_lshr_b32 s37, s37, 3
    s_sub_u32 s37, s37, s36
    s_mul_i32 s7, s5, {64 * 2752}
    s_lshl_b32 s35, s36, 4
    s_add_u32 s7, s7, s35
        ''')
    g(f'''
    v_mul_u32_u24 v13, 2752, v3
    v_add3_u32 v{W1}, v13, v12, s7
    v_lshl_or_b32 v203, v3, 2, v12
    ''')
    if o['mergez']:
        g('''
        v_and_b32 v9, 7, v2
        v_min_u32 v9, 5, v9
        v_lshlrev_b32 v9, 4, v9
        v_lshl_or_b32 v9, v3, 2, v9
        v_lshrrev_b32 v13, 3, v2
        v_lshl_or_b32 v9, v13, 1, v9
        v_add_u32 v9, s35, v9
        ''')
    else:
        g('v_add_u32 v9, s35, v203')
    g(f'''
    s_lshl_b32 s7, s36, 13
    s_add_u32 s7, s7, s6
    v_lshrrev_b32 v13, 3, v2
    v_lshl_or_b32 v13, v3, 1, v13
    v_lshlrev_b32 v13, 10, v13
    v_and_b32 v14, 7, v2
    v_lshl_or_b32 v13, v14, 4, v13
    v_add_u32 v{W2}, s7, v13
    s_movk_i32 s38, 11008
    s_movk_i32 s39, 8192
    s_mov_b32 s54, 0x003f003f
    s_mov_b32 s55, s54
    s_mov_b64 exec, s[54:55]
    ''')
    for t in range(16):
        r = W1 + 4 * t
        if t < 15:
            g(f'v_add_u32 v{r + 4}, s38, v{r}')
        g(f'global_load_dwordx4 v[{r}:{r + 3}], v{r}, s[20:21] {WNT}')
    if o['mergez']:
        g('s_mov_b64 exec, -1')
        g('global_load_ushort v9, v9, s[22:23]')
    else:
        g('global_load_dword v9, v9, s[22:23]')
        g('s_mov_b64 exec, -1')
    for t in range(6):
        r = W2 + 4 * t
        if t < 5:
            g(f'v_add_u32 v{r + 4}, s39, v{r}')
        g(f'global_load_dwordx4 v[{r}:{r + 3}], v{r}, s[24:25] {WNT}')
    g('s_barrier')
    g.stamp(2)
    if o['pure']:
        g('s_waitcnt vmcnt(0)')
        for i in range(3, 10): g.stamp(i)
        g('s_getreg_b32 s80, hwreg(HW_REG_HW_ID)')
        g.stamp_out(11, '0')
        g('s_endpgm')
    masks(g, M4, M8, 'v13', 'v14')
    g(f'''
    s_lshl_b32 s7, s58, 13
    s_lshl_b32 s35, s59, 10
    s_add_u32 s35, s35, s7
    s_add_u32 s35, s35, {WS_Q}
    v_add_u32 v200, s35, v10
    s_lshl_b32 s7, s4, 6
    s_add_u32 s7, s7, {WS_X}
    v_and_b32 v13, 7, v1
    v_lshl_add_u32 v206, v13, 3, s7
    s_lshl3_add_u32 s7, s5, s7
    v_mov_b32 v207, s7
    s_lshl_b32 s7, s4, 13
    s_add_u32 s7, s7, {WS_Q + 4096}
    v_add_u32 v201, s7, v10
    v_add_u32 v202, {hex(WS_Z - WS_Q)}, v201
    v_add_u32 v205, {hex(WS_Z - WS_Q)}, v200
    s_lshl_b32 s7, s5, 5
    s_add_u32 s7, s7, s4
    s_lshl_b32 s7, s7, 9
    s_add_u32 s7, s7, {WS_B}
    v_and_b32 v13, 1, v3
    v_lshlrev_b32 v13, 5, v13
    v_lshl_or_b32 v13, v2, 6, v13
    v_lshrrev_b32 v14, 1, v3
    v_lshl_or_b32 v13, v14, 3, v13
    v_add_u32 v204, s7, v13
    v_and_b32 v13, 3, v1
    v_lshlrev_b32 v13, 2, v13
    v_mov_b32 v14, 0
    ds_write_b32 v13, v14 offset:{L_ZERO}
    s_mov_b32 s40, {SPIN}
    s_getreg_b32 s39, hwreg(HW_REG_XCC_ID, 0, 4)
    s_waitcnt vmcnt(39)
    ''')
    g.stamp(3)
    for i in range(4):
        g(f'v_lshlrev_b32 {E[2 * i]}, 16, v{4 + i}')
        g(f'v_and_b32 {E[2 * i + 1]}, 0xffff0000, v{4 + i}')
    g('v_lshlrev_b32 v8, 16, v8')

    def normalise_own():
        layernorm_stats(g, E, 'v4', 'v5', 's35', 'v6', 'v7')
        g('v_sub_f32 v8, v8, v6')
        bf_round(g, 'v8', 'v8')
        g('v_mul_f32 v8, v8, v7')
        g('v_cvt_pk_bf16_f32 v8, v8, v8')
        g('s_nop 1')

    def gemv16(src, base, acc, vm0):
        for t in range(17):
            if t < 16:
                for j in range(4):
                    g(f'v_and_b32_dpp v{AS[t % 2] + j}, {src}, v{M4 + j} row_newbcast:{t} {DPPF}')
            else:
                g('s_nop 1')
            if t >= 1:
                k = t - 1
                if k % 4 == 0 and k < 12:
                    g(f's_waitcnt vmcnt({vm0 - (k + 3)})')
                elif k >= 12:
                    g(f's_waitcnt vmcnt({vm0 - k})')
                g(mfma(acc, AS[k % 2], base + 4 * k, k == 0))
    normalise_own()
    gemv16('v8', WQ, QA, 38)
    for i in range(8):
        g(f'v_sub_f32 {E[i]}, {E[i]}, v6')
    if not o['mergez']:
        g(f'''
        s_waitcnt lgkmcnt(0)
        s_add_u32 s34, s34, 0x01010101
        v_mov_b32 v{QA + 2}, s34
        v_mov_b32 v{QA + 3}, s39
        {'global_load_dword v14, v10, s[8:9]' if 's' in o['skip'] else f'global_store_dwordx4 v200, v[{QA}:{QA + 3}], s[32:33] sc1'}
        ''')
    g.stamp(4)
    for i in range(8):
        bf_round(g, E[i], E[i])
    for i in range(8):
        g(f'v_mul_f32 {E[i]}, {E[i]}, v7')
    for i in range(8):
        bf_round(g, E[i], E[i])
    g('v_and_b32 v8, 0xffff0000, v8')
    normalise_own()
    gemv16('v8', W1, ZA, 22 if o['mergez'] else 23)
    if o['mergez']:
        g(f'''
        s_waitcnt lgkmcnt(0)
        s_add_u32 s34, s34, 0x01010101
        v_mov_b32 v{QA + 3}, s39
        v_mov_b32 v{QA + 2}, s34
        s_mov_b32 s56, 0x3f3f3f3f
        s_mov_b32 s57, s56
        s_nop 1
        v_mov_b32_dpp v{ZA}, v{ZA + 1} row_ror:8 row_mask:0xf bank_mask:0xc
        v_cndmask_b32 v{QA + 3}, v{QA + 3}, v{ZA}, s[56:57]
        {'' if 's' in o['skip'] else f'global_store_dwordx4 v200, v[{QA}:{QA + 3}], s[32:33] sc1'}
        ''')
        if o['qlin']:
            g(f'''
            v_mov_b32 v12, s39
            v_mov_b32 v13, s34
            s_mov_b64 exec, 1
            global_store_dwordx2 v207, v[12:13], s[32:33] sc1
            s_mov_b64 exec, -1
            ''')
    else:
        g(f'''
        s_nop 7
        v_mov_b32 v{ZA + 2}, s34
        v_mov_b32 v{ZA + 3}, s34
        s_mov_b64 exec, s[54:55]
        {'' if 's' in o['skip'] else f'global_store_dwordx4 v205, v[{ZA}:{ZA + 3}], s[32:33] sc1'}
        ''')
    g.stamp(5)
    g('s_barrier')
    g.stamp(6)
    ZP = 48; QP = 16

    def polls(base, addr, n):
        if 'p' in o['skip']: return
        for p in range(8):
            g(f'global_load_dwordx{n} v[{base + 4 * p}:{base + 4 * p + n - 1}], {addr}, s[32:33] offset:{1024 * p - 4096} sc1')

    def alleq(base, word, sreg):
        for p in range(4):
            g(f'v_bitop3_b32 v{10 + p}, v{base + 8 * p + word}, v{base + 8 * p + 4 + word}, {sreg} bitop3:0x7e')
        g('v_or3_b32 v10, v10, v11, v12')
        g('v_or_b32 v10, v10, v13')

    def sum8(base):
        for st in (1, 2, 4):
            for p in range(0, 8, 2 * st):
                a = base + 4 * p; b = base + 4 * (p + st)
                g(f'v_pk_add_f32 v[{a}:{a + 1}], v[{a}:{a + 1}], v[{b}:{b + 1}]')
    g('L_pollq:')
    if not o['mergez']:
        g('s_mov_b64 exec, s[54:55]')
        polls(ZP, 'v202', 3)
        g('s_mov_b64 exec, -1')
    polls(QP, 'v201', 4)
    if o['qlin'] and 'p' not in o['skip']:
        g('global_load_dwordx2 v[48:49], v206, s[32:33] sc1')
    g('''
    s_sub_u32 s40, s40, 1
    s_cbranch_scc1 L_end
    s_waitcnt vmcnt(0)
    L_warm3:
    ''')
    alleq(QP, 2, 's34')
    if o['qlin']:
        g('v_xor_b32 v11, s34, v49')
        g('v_or_b32 v10, v10, v11')
    g('v_cmp_ne_u32 vcc, 0, v10')
    if 'p' not in o['skip']: g('s_cbranch_vccnz L_pollq')
    sum8(QP)
    g(f'''
    v_cvt_pk_bf16_f32 v{QP}, v{QP}, v{QP + 1}
    ds_write_b32 v203, v{QP} offset:{L_Q}
    ''')
    if o['qlin']:
        g('''
        v_cmp_ne_u32 vcc, s39, v48
        s_cmp_lg_u64 vcc, 0
        s_cselect_b32 s35, 1, 0
        v_mov_b32 v10, s35
        ''')
    else:
        alleq(QP, 3, 's39')
    if o['mergez'] and not o['qlin']:
        g('s_nop 1')
        g(f'v_mov_b32_dpp v10, v10 row_newbcast:15 {DPPF}')
    if o['diag']:
        g(f's_sub_u32 s80, {SPIN}, s40')
    g(f'''
    v_mov_b32 v11, 0
    ds_write_b32 v11, v10 offset:{L_FLAG}
    {'s_cbranch_execz L_chkz' if WARM else ''}
    s_waitcnt lgkmcnt(0)
    ''')
    g.stamp(7)
    g('''
    s_barrier
    s_barrier
    L_chkz:
    ''')
    k0 = hex(f2u(0.044715)); k1 = hex(f2u(-2.0 * 0.7978845608028654 * LOG2E))
    if o['mergez']:
        g.stamp(8)
        for st in (1, 2, 4):
            for p in range(0, 8, 2 * st):
                g(f'v_add_f32 v{QP + 4 * p + 3}, v{QP + 4 * p + 3}, v{QP + 4 * (p + st) + 3}')
        z = f'v{QP + 3}'
        bf_round(g, z, z)
        g(f'''
        v_lshlrev_b32 v9, 16, v9
        v_add_f32 {z}, {z}, v9
        ''')
        bf_round(g, z, z)
        g(f'''
        v_mul_f32 v10, {z}, {z}
        v_mul_f32 v10, v10, {z}
        v_fmamk_f32 v10, v10, {k0}, {z}
        v_mul_f32 v10, {k1}, v10
        v_exp_f32 v10, v10
        s_nop 0
        v_add_f32 v10, 1.0, v10
        v_rcp_f32 v10, v10
        s_nop 0
        v_mul_f32 v10, v10, {z}
        v_cvt_pk_bf16_f32 v10, v10, v10
        s_nop 1
        ''')
    else:
        alleq(ZP, 2, 's34')
        g('''
        v_cmp_ne_u32 vcc, 0, v10
        s_and_b64 vcc, vcc, s[54:55]
        ''')
        if 'p' not in o['skip']: g('s_cbranch_vccnz L_retryz')
        g.stamp(8)
        sum8(ZP)
        z0, z1 = f'v{ZP}', f'v{ZP + 1}'
        k0 = hex(f2u(0.044715)); k1 = hex(f2u(-2.0 * 0.7978845608028654 * LOG2E))
        g(f'''
        v_cvt_pk_bf16_f32 {z0}, {z0}, {z1}
        v_lshlrev_b32 v10, 16, v9
        v_and_b32 v11, 0xffff0000, v9
        v_and_b32 {z1}, 0xffff0000, {z0}
        v_lshlrev_b32 {z0}, 16, {z0}
        v_add_f32 {z0}, {z0}, v10
        v_add_f32 {z1}, {z1}, v11
        v_cvt_pk_bf16_f32 {z0}, {z0}, {z1}
        v_and_b32 {z1}, 0xffff0000, {z0}
        v_lshlrev_b32 {z0}, 16, {z0}
        v_mul_f32 v10, {z0}, {z0}
        v_mul_f32 v11, {z1}, {z1}
        v_mul_f32 v10, v10, {z0}
        v_mul_f32 v11, v11, {z1}
        v_fmamk_f32 v10, v10, {k0}, {z0}
        v_fmamk_f32 v11, v11, {k0}, {z1}
        v_mul_f32 v10, {k1}, v10
        v_mul_f32 v11, {k1}, v11
        v_exp_f32 v10, v10
        v_exp_f32 v11, v11
        s_nop 0
        v_add_f32 v10, 1.0, v10
        v_add_f32 v11, 1.0, v11
        v_rcp_f32 v10, v10
        v_rcp_f32 v11, v11
        s_nop 0
        v_mul_f32 v10, v10, {z0}
        v_mul_f32 v11, v11, {z1}
        v_cvt_pk_bf16_f32 v10, v10, v10
        v_cvt_pk_bf16_f32 v11, v11, v11
        s_nop 1
        ''')
    BA = 184
    for jj in range(6):
        if jj == 5:
            g('s_cmp_eq_u32 s37, 5')
            g('s_cbranch_scc1 L_five')
        a = AS[jj % 2]
        g(f'v_mov_b32_dpp v12, v10 row_newbcast:{jj} row_mask:0xf bank_mask:0x3')
        if o['mergez']:
            g(f'v_mov_b32_dpp v12, v10 row_newbcast:{jj + 8} row_mask:0xf bank_mask:0xc')
        else:
            g(f'v_mov_b32_dpp v12, v11 row_newbcast:{jj} row_mask:0xf bank_mask:0xc')
        for j in range(4):
            g(f'v_and_b32 v{a + j}, v12, v{M8 + j}')
        g('s_nop 1')
        g(mfma(BA, a, W2 + 4 * jj, jj == 0))
    g(f'''
    L_five:
    s_nop 7
    v_permlane32_swap_b32 v{BA}, v{BA + 1}
    v_permlane32_swap_b32 v{BA + 2}, v{BA + 3}
    v_mov_b32 v11, s34
    v_mov_b32 v13, s34
    v_add_f32_dpp v10, v{BA + 1}, v{BA} row_ror:8 {DPPF}
    v_add_f32_dpp v12, v{BA + 3}, v{BA + 2} row_ror:8 {DPPF}
    {'s_cbranch_execz L_wend' if WARM else ''}
    s_mov_b32 exec_lo, 0x00ff00ff
    s_mov_b32 exec_hi, 0x00ff00ff
    global_store_dwordx2 v204, v[10:11], s[32:33] sc1
    global_store_dwordx2 v204, v[12:13], s[32:33] offset:16 sc1
    ''')
    g.stamp(9)
    g('s_barrier')
    if o['b3b']:
        g('s_barrier')
    g('s_barrier')
    g.stamp_out(11, '0')
    g('s_endpgm')
    if not o['mergez']:
        g('''
        L_retryz:
        s_sub_u32 s40, s40, 1
        s_cbranch_scc1 L_end
        s_mov_b64 exec, s[54:55]
        ''')
        polls(ZP, 'v202', 3)
        g('''
        s_mov_b64 exec, -1
        s_waitcnt vmcnt(0)
        s_branch L_chkz
        ''')
    if WARM:
        g('L_wend:')
        if o.get('wdiag'):
            g.stamp(1)
            g.stamp_out(2, '5')
        g('s_endpgm')


def gen(opt):
    o = dict(DEFAULTS); o.update(opt)
    if o['pure']:
        o['warm'] = min(o['warm'], 1)
    g = G(o)
    g.stamp(0)
    g('''
    s_load_dwordx16 s[8:23], s[0:1], 0
    s_load_dwordx8 s[24:31], s[0:1], 64
    s_load_dwordx2 s[32:33], s[0:1], 96
    v_readfirstlane_b32 s3, v0
    s_cmp_ge_u32 s2, 256
    s_cbranch_scc1 L_end
    ''')
    if o['lin']:
        g('s_lshr_b32 s4, s2, 3\ns_and_b32 s5, s2, 7')
    else:
        g('s_and_b32 s4, s2, 31\ns_lshr_b32 s5, s2, 5')
    g('''
    v_and_b32 v1, 63, v0
    s_cmp_lt_u32 s3, 64
    s_cbranch_scc1 L_aux
    s_cmp_lt_u32 s3, 320
    s_cbranch_scc1 L_stream
    ''')
    g('''
    s_getpc_b64 s[36:37]
    L_pc:
    v_lshlrev_b32 v2, 7, v1
    v_add_u32 v3, 0x2000, v2
    v_min_u32 v2, L_codeend-L_pc-4, v2
    v_min_u32 v3, L_codeend-L_pc-4, v3
    global_load_dword v2, v2, s[36:37]
    global_load_dword v3, v3, s[36:37]
    s_barrier
    ''')
    if o['warm'] and not o['pure']:
        g('''
        s_mov_b32 s6, 0
        s_mov_b64 s[54:55], 0
        s_waitcnt vmcnt(0) lgkmcnt(0)
        s_mov_b64 exec, 0
        s_branch L_warm1
        ''')
    else:
        g('s_endpgm')
    pro = g.take()
    gen_aux(g, o)
    aux = g.take()
    gen_stream(g, o)
    strm = g.take()
    body = pro + aux + strm + ['L_codeend:']
    head = open('recurrent_scan__sliding_block_cached__mixer_channel_mlp__decode.s.ref').read().split('; Override launch')[0]
    return head + f'''; One workgroup per (head, 256-key split): wave 0 = projection / MLP helper, waves 1-4 stream K and V, wave 5 = code warm-up.
; @launch grid=(256,1,1) block=(384,1,1) lds={LDS_BYTES}
.amdgcn_target "amdgcn-amd-amdhsa--gfx950"
.text
.globl {KN}
.p2align 8
.type {KN},@function
{KN}:
''' + '\n'.join(body) + f'''
.section .rodata,"a"
.p2align 6
.amdhsa_kernel {KN}
  .amdhsa_next_free_vgpr 244
  .amdhsa_next_free_sgpr 96
  .amdhsa_accum_offset 244
  .amdhsa_group_segment_fixed_size 0
  .amdhsa_kernarg_size 104
  .amdhsa_user_sgpr_count 2
  .amdhsa_user_sgpr_kernarg_segment_ptr 1
  .amdhsa_system_sgpr_workgroup_id_x 1
  .amdhsa_float_denorm_mode_32 3
.end_amdhsa_kernel
'''


if __name__ == '__main__':
    out = sys.argv[1]
    opt = eval(sys.argv[2]) if len(sys.argv) > 2 else {}
    open(out, 'w').write(gen(opt))
```

```python
import sys, struct

KN = 'recurrent_scan__sliding_block_cached__mixer_channel_mlp__decode_kernel'

def f2u(x):
    return struct.unpack('<I', struct.pack('<f', x))[0]

LOG2E = 1.4426950408889634
WS_Q = 0x10000
WS_Z = 0x60000
WS_O = 0xB0000
WS_Y = 0x100000
WS_B = 0x140000
WS_X = 0x8000
WS_ST = 0x200000
L_Q = 0; L_ZERO = 256; L_MAX = 272; L_SUM = 288; L_FLAG = 304; L_O = 512; L_Y = 2560; LDS_BYTES = 8192
DPPF = 'row_mask:0xf bank_mask:0xf'
SPIN = 100000

DEFAULTS = dict(diag=0, nt=1, wnt=1, warm=1, loc=1, b0=4.5, b1=3, sched=(8, 8, 0, 1), thr2=12, sp=(2, 2, 3), gap=1, b3b=1,
                pure=0, cpfsplit=1, ytaux=0, w2skip=1, yv=0, sbpos='issue', prew=0, kvmap=0, qlin=1, mergez=1, shrink=1, sleep1=0, skip='', ytouch=1, probe=None, lin=0, outf='', map=0, spthr=0)


class G:
    def __init__(self, opt):
        self.L = []
        self.o = opt

    def __call__(self, s):
        for line in s.strip('\n').split('\n'):
            line = line.strip()
            if not line:
                continue
            self.L.append(line if line.endswith(':') else '    ' + line)

    def take(self):
        L, self.L = self.L, []
        return L

    def stamp(self, i):
        if self.o['diag']:
            self(f's_memrealtime s[{60 + 2 * i}:{61 + 2 * i}]')

    def stamp_out(self, n, wave):
        if not self.o['diag']:
            return
        self(f'''
        s_waitcnt lgkmcnt(0)
        s_lshl_b32 s41, s2, 3
        s_add_u32 s41, s41, {wave}
        s_lshl_b32 s41, s41, 7
        s_add_u32 s41, s41, {WS_ST}
        s_mov_b64 exec, 0xffff
        v_lshl_add_u32 v2, v1, 2, s41
        ''')
        for i in range(n):
            self(f'v_writelane_b32 v3, s{60 + 2 * i}, {i}')
        self('global_store_dword v2, v3, s[32:33]')


def wave_sum(g, regs, op='v_add_f32'):
    pad = max(0, 2 - (len(regs) - 1))
    for ctl in ('row_ror:1 ' + DPPF, 'row_ror:2 ' + DPPF, 'row_ror:4 ' + DPPF, 'row_ror:8 ' + DPPF,
                'row_bcast:15 row_mask:0xa bank_mask:0xf', 'row_bcast:31 row_mask:0xc bank_mask:0xf'):
        if pad:
            g(f's_nop {pad - 1}')
        for r in regs:
            g(f'{op}_dpp {r}, {r}, {r} {ctl}')


def bf_round(g, dst, src):
    g(f'v_cvt_pk_bf16_f32 {dst}, {src}, {src}')
    g(f'v_and_b32 {dst}, 0xffff0000, {dst}')


def layernorm_stats(g, e, t0, t1, smean, vmeanb, vrinv):
    g(f'''
    v_add_f32 {t0}, {e[0]}, {e[1]}
    v_add_f32 {t1}, {e[2]}, {e[3]}
    v_add_f32 {t0}, {t0}, {e[4]}
    v_add_f32 {t1}, {t1}, {e[5]}
    v_add_f32 {t0}, {t0}, {e[6]}
    v_add_f32 {t1}, {t1}, {e[7]}
    v_add_f32 {t0}, {t0}, {t1}
    ''')
    wave_sum(g, [t0])
    g(f'''
    v_mul_f32 {t0}, {hex(f2u(1.0 / 512))}, {t0}
    s_nop 0
    v_readlane_b32 {smean}, {t0}, 63
    s_nop 1
    v_subrev_f32 {t0}, {smean}, {e[0]}
    v_subrev_f32 {vmeanb}, {smean}, {e[1]}
    v_mul_f32 {t0}, {t0}, {t0}
    v_mul_f32 {t1}, {vmeanb}, {vmeanb}
    ''')
    for i in range(2, 8, 2):
        g(f'''
        v_subrev_f32 {vrinv}, {smean}, {e[i]}
        v_subrev_f32 {vmeanb}, {smean}, {e[i + 1]}
        v_fmac_f32 {t0}, {vrinv}, {vrinv}
        v_fmac_f32 {t1}, {vmeanb}, {vmeanb}
        ''')
    g(f'v_add_f32 {t0}, {t0}, {t1}')
    g(f'v_mov_b32 {vmeanb}, {smean}')
    wave_sum(g, [t0])
    g(f'v_mul_f32 {t0}, {hex(f2u(1.0 / 512))}, {t0}')
    bf_round(g, vmeanb, vmeanb)
    g(f'v_readlane_b32 {smean}, {t0}, 63')
    g('s_nop 1')
    g(f'v_mov_b32 {t0}, {smean}')
    bf_round(g, t0, t0)
    g(f'v_add_f32 {t0}, {hex(f2u(1e-5))}, {t0}')
    bf_round(g, t0, t0)
    g(f'v_sqrt_f32 {t0}, {t0}')
    g('s_nop 0')
    bf_round(g, t0, t0)
    g(f'v_rcp_f32 {vrinv}, {t0}')
    g('s_nop 0')


def masks(g, M4, M8, t0, t1):
    g(f'''
    v_and_b32 {t0}, 1, v1
    v_lshlrev_b32 {t0}, 4, {t0}
    v_mov_b32 {t1}, 0xffff
    v_lshlrev_b32 {t0}, {t0}, {t1}
    v_bfe_u32 {t1}, v1, 1, 2
    ''')
    for j in range(4):
        g(f'v_cmp_eq_u32 s[{44 + 2 * j}:{45 + 2 * j}], {j}, {t1}')
        g(f'v_mov_b32 v{M4 + j}, 0')
    for j in range(4):
        g(f'v_mov_b32_dpp v{M4 + j}, {t0} quad_perm:[0,1,2,3] row_mask:0xf bank_mask:{hex(1 << j)}')
        g(f'v_cndmask_b32 v{M8 + j}, 0, {t0}, s[{44 + 2 * j}:{45 + 2 * j}]')


def mfma(d, a, b, first):
    c = '0' if first else f'v[{d}:{d + 3}]'
    return f'v_mfma_f32_16x16x32_bf16 v[{d}:{d + 3}], v[{a}:{a + 3}], v[{b}:{b + 3}], {c}'


M4 = 192; M8 = 196


def gen_stream(g, o):
    NT = 'nt' if o['nt'] else ''
    WNT = 'nt' if o['wnt'] else ''
    WARM = o['warm']
    KR = 16; VR = 80; WO = 144; QB = 160; DT = 176; OA = 220; YA = 224
    nskip = [0]

    def wskip():
        if not WARM:
            return ''
        nskip[0] += 1
        g(f's_cbranch_execz L_ws{nskip[0]}')
        return f'L_ws{nskip[0]}:'
    g(f'''
    L_stream:
    ''')
    KV = o['kvmap']
    if KV == 0:
        TSH = 12
        g('''
        s_lshl_b32 s7, s4, 21
        s_lshl_b32 s35, s5, 16
        s_add_u32 s7, s7, s35
        s_lshl_b32 s35, s3, 8
        s_add_u32 s7, s7, s35
        s_and_b32 s35, s2, 24
        s_lshl_b32 s35, s35, 9
        s_add_u32 s7, s7, s35
        s_add_u32 s7, s7, 0x17c000
        ''')
    elif KV in (1, 2):
        TSH = 17
        g('''
        s_lshl_b32 s7, s4, 21
        s_lshl_b32 s35, s5, 14
        s_add_u32 s7, s7, s35
        s_lshl_b32 s35, s3, 6
        s_add_u32 s7, s7, s35
        s_add_u32 s7, s7, 0x17f000
        ''')
        if KV == 2:
            g('s_and_b32 s35, s2, 24\ns_lshl_b32 s35, s35, 14\ns_add_u32 s7, s7, s35')
    elif KV in (3, 4):
        TSH = 14
        g('''
        s_lshl_b32 s7, s4, 21
        s_lshl_b32 s35, s5, 16
        s_add_u32 s7, s7, s35
        s_lshl_b32 s35, s3, 6
        s_add_u32 s7, s7, s35
        s_add_u32 s7, s7, 0x17f000
        ''')
        if KV == 3:
            g('s_and_b32 s35, s2, 24\ns_lshl_b32 s35, s35, 11\ns_add_u32 s7, s7, s35')
        else:
            g('s_and_b32 s35, s5, 3\ns_lshl_b32 s35, s35, 14\ns_add_u32 s7, s7, s35')
    g(f'''
    v_lshlrev_b32 v2, 4, v1
    v_and_b32 v3, 0x30, v2
    v_and_b32 v4, 0xc0, v2
    v_lshl_or_b32 v3, v4, 2, v3
    v_lshrrev_b32 v4, 4, v1
    v_lshl_or_b32 v3, v4, 6, v3
    v_add_u32 v{KR + 12}, s7, v3
    v_add_u32 v{VR + 12}, s7, v2
    ''')
    for T in range(1, 4):
        g(f'v_xor_b32 v{KR + 16 * T + 12}, {hex(T << TSH)}, v{KR + 12}')
    for T in range(1, 4):
        g(f'v_xor_b32 v{VR + 16 * T + 12}, {hex(T << TSH)}, v{VR + 12}')
    g(f'''
    s_lshr_b32 s6, s3, 6
    s_sub_u32 s6, s6, 1
    s_and_b32 s35, s4, 3
    s_lshl_b32 s35, s35, 5
    s_lshl_b32 s37, s5, 7
    s_add_u32 s35, s35, s37
    v_and_b32 v5, 7, v1
    v_and_b32 v6, 1, v4
    v_lshlrev_b32 v6, 1, v6
    v_lshl_or_b32 v6, v5, 2, v6
    v_add_u32 v204, s35, v6
    v_lshrrev_b32 v9, 3, v1
    s_lshl_b32 s35, s5, 14
    s_and_b32 s38, s4, 3
    s_lshl_b32 s38, s38, 7
    s_add_u32 s35, s35, s38
    s_add_u32 s35, s35, {WS_B + 4096}
    v_lshlrev_b32 v8, 9, v9
    v_lshl_or_b32 v8, v5, 4, v8
    v_add_u32 v211, s35, v8
    v_add_u32 v212, 0x2000, v211
    v_add_u32 v218, {hex((WS_Y - WS_B) & 0xffffffff)}, v211
    v_add_u32 v219, 0x2000, v218
    {'v_add_u32 v245, 0x22000, v218' if o['yv'] == 2 else ''}
    {'v_add_u32 v246, 0x20000, v218' if o['yv'] == 2 else ''}
    s_lshr_b32 s35, s4, 2
    s_cmp_eq_u32 s35, s5
    s_cselect_b32 s53, s6, 0
    s_cmp_eq_u32 s53, 1
    s_waitcnt lgkmcnt(0)
    s_load_dword s34, s[32:33], 0
    s_cbranch_scc0 L_nosmall
    global_load_ushort v214, v204, s[8:9]
    global_load_ushort v215, v204, s[26:27]
    global_load_ushort v216, v204, s[28:29]
    ''')
    if o['ytouch'] and not o['ytaux']:
        f = {1: '', 2: 'sc1', 3: 'nt'}[o['ytouch']]
        g(f'''
        global_load_dword v216, v218, s[32:33] offset:-4096 {f}
        global_load_dword v216, v218, s[32:33] {f}
        global_load_dword v216, v219, s[32:33] offset:-4096 {f}
        global_load_dword v216, v219, s[32:33] {f}
        ''')
        if o['yv'] == 2:
            g(f'''
            global_load_dword v216, v245, s[32:33] offset:-4096 {f}
            global_load_dword v216, v245, s[32:33] {f}
            global_load_dword v216, v246, s[32:33] offset:-4096 {f}
            global_load_dword v216, v246, s[32:33] {f}
            ''')
    g(f'''
    L_nosmall:
    s_barrier
    ''')
    g.stamp(1)
    n = [0]
    fixed = [None]

    def vload(txt):
        w0, w1, i0, i1 = o['sched']
        x = min(1.0, max(0.0, (n[0] - i0) / float(i1 - i0)))
        thr = fixed[0] or int(round(w0 + (w1 - w0) * x))
        if n[0] >= thr:
            g(f's_waitcnt vmcnt({thr - 1})')
        elif n[0] > 0 and o['gap']:
            g('s_nop 0')
        g(txt)
        n[0] += 1

    def tile(base, T, sp):
        return [f'global_load_dwordx4 v[{base + 16 * T + 4 * i}:{base + 16 * T + 4 * i + 3}], v{base + 16 * T + 12}, {sp} offset:{1024 * i} {NT}' for i in range(4)]
    seq = []
    for T in range(4):
        seq += tile(KR, T, 's[10:11]')
    for T in range(4):
        seq += tile(VR, T, 's[12:13]')
    seq += [f'global_load_dwordx4 v[{WO + 4 * j}:{WO + 4 * j + 3}], v{WO + 12}, s[16:17] offset:{1024 * j} {WNT}' for j in range(4)]
    NB0 = int(round(4 * o['b0'])); NB1 = int(round(16 + 4 * o['b1']))
    NFIRST = min(8, int(o['sched'][0]))
    for l in seq[:NFIRST]:
        vload(l)
    g.stamp(2)
    masks(g, M4, M8, 'v7', 'v6')
    g(f'''
    v_and_b32 v7, 0x30, v2
    v_lshl_or_b32 v7, v4, 6, v7
    ''')
    for t in range(4):
        g(f'v_mov_b32 v{200 + t}, {L_ZERO}')
    for t in range(4):
        g(f'v_mov_b32_dpp v{200 + t}, v7 quad_perm:[0,1,2,3] row_mask:0xf bank_mask:{hex(1 << t)}')
    g(f'''
    s_lshl_b32 s36, s4, 3
    s_add_u32 s36, s36, s5
    s_lshl_b32 s36, s36, 10
    s_lshl_b32 s35, s4, 17
    s_add_u32 s35, s35, s37
    s_lshl_b32 s38, s6, 15
    s_add_u32 s35, s35, s38
    v_bfe_u32 v6, v1, 3, 1
    v_lshlrev_b32 v7, 13, v4
    v_lshl_or_b32 v7, v6, 12, v7
    v_lshl_or_b32 v7, v5, 4, v7
    v_add_u32 v{WO + 12}, s35, v7
    s_lshl_b32 s35, s4, 13
    s_lshl_b32 s38, s6, 8
    s_add_u32 s35, s35, s38
    s_add_u32 s35, s35, {WS_O}
    v_lshlrev_b32 v7, 10, v5
    v_lshl_or_b32 v7, v4, 6, v7
    v_lshl_or_b32 v7, v6, 5, v7
    v_add_u32 v205, s35, v7
    v_and_b32 v7, 15, v1
    v_lshlrev_b32 v8, 6, v7
    v_lshl_or_b32 v8, v4, 4, v8
    s_add_u32 s35, s36, {WS_O}
    v_add_u32 v206, s35, v8
    s_lshl_b32 s35, s6, 9
    s_add_u32 s35, s35, {L_O}
    v_lshl_add_u32 v207, v1, 3, s35
    s_mul_i32 s35, s6, 1280
    s_add_u32 s35, s35, {L_Y}
    v_mul_u32_u24 v8, 320, v4
    v_lshl_add_u32 v8, v7, 4, v8
    v_add_u32 v208, s35, v8
    v_bfe_u32 v8, v1, 2, 1
    v_mul_u32_u24 v8, 320, v8
    v_lshrrev_b32 v9, 3, v1
    v_lshl_add_u32 v8, v9, 4, v8
    v_and_b32 v10, 3, v1
    v_lshl_add_u32 v8, v10, 2, v8
    v_add_u32 v209, {L_Y}, v8
    s_lshl_b32 s35, s5, 5
    s_add_u32 s35, s35, s4
    s_lshl_b32 s35, s35, 9
    s_add_u32 s35, s35, {WS_Y}
    v_lshl_add_u32 v210, v1, 3, s35
    {'v_xor_b32 v244, 0x22000, v210' if o['yv'] == 2 else ''}
    s_lshl_b32 s39, s6, 2
    v_mov_b32 v213, s39
    v_and_b32 v8, 1, v4
    v_cmp_eq_u32 s[42:43], 1, v8
    s_mov_b32 s40, {SPIN}
    s_waitcnt lgkmcnt(0)
    s_add_u32 s34, s34, 0x01010101
    ''')
    for i in range(NFIRST, NB1):
        vload(seq[i])
        if i + 1 == NB0:
            if 'b' not in o['skip']:
                g('s_barrier')
            g.stamp(3)
            fixed[0] = o['thr2']
    rest = seq[NB1:]
    if o['pure']:
        g.stamp(4)
        for l in rest:
            vload(l)
        g('s_waitcnt vmcnt(4)')
        for i in (5, 6, 7, 11): g.stamp(i)
        g('s_waitcnt vmcnt(0)')
        for i in (8, 9, 10): g.stamp(i)
        g('s_add_u32 s6, s6, 1')
        g.stamp_out(13, 's6')
        g('s_endpgm')

    def sprinkle(k):
        k = min(k, len(rest))
        if k == 0:
            return
        lab = wskip()
        for _ in range(k):
            if o['spthr']:
                g(f's_waitcnt vmcnt({o["spthr"] - 1})')
            g(rest.pop(0))
        g(lab)
    g.stamp(4)
    g('s_barrier')
    g.stamp(5)
    g('L_warm1:')
    for t in range(4):
        g(f'ds_read_b128 v[{QB + 4 * t}:{QB + 4 * t + 3}], v{200 + t}')
    g(f'''
    v_mov_b32 v13, 0
    ds_read_b32 v13, v13 offset:{L_FLAG}
    s_waitcnt vmcnt({NB1 - 16}) lgkmcnt(0)
    ''')
    for tp in range(4):
        for T in range(4):
            g(mfma(DT + 4 * T, KR + 16 * T + 4 * tp, QB + 4 * tp, tp == 0))
    g('v_readfirstlane_b32 s52, v13')
    sprinkle(o['sp'][0])
    g('s_nop 3')
    for r in range(4):
        for T in range(4):
            if r == 0:
                g(f'v_mov_b32_dpp v{8 + T}, v{DT + 4 * T} quad_perm:[0,0,0,0] {DPPF}')
            else:
                g(f'v_add_f32_dpp v{8 + T}, v{DT + 4 * T + r}, v{8 + T} quad_perm:[{r},{r},{r},{r}] {DPPF}')
    sc = hex(f2u(128 ** -0.5))
    g(f'''
    v_cvt_pk_bf16_f32 v12, v8, v9
    v_cvt_pk_bf16_f32 v13, v10, v11
    v_lshlrev_b32 v8, 16, v12
    v_and_b32 v9, 0xffff0000, v12
    v_lshlrev_b32 v10, 16, v13
    v_and_b32 v11, 0xffff0000, v13
    v_mul_f32 v8, {sc}, v8
    v_mul_f32 v9, {sc}, v9
    v_mul_f32 v10, {sc}, v10
    v_mul_f32 v11, {sc}, v11
    v_cvt_pk_bf16_f32 v12, v8, v9
    v_cvt_pk_bf16_f32 v13, v10, v11
    v_lshlrev_b32 v8, 16, v12
    v_and_b32 v9, 0xffff0000, v12
    v_lshlrev_b32 v10, 16, v13
    v_and_b32 v11, 0xffff0000, v13
    v_max_f32 v12, v8, v9
    v_max3_f32 v12, v10, v11, v12
    s_nop 1
    v_max_f32_dpp v12, v12, v12 row_ror:4 {DPPF}
    s_nop 1
    v_max_f32_dpp v12, v12, v12 row_ror:8 {DPPF}
    s_nop 1
    v_max_f32_dpp v12, v12, v12 row_bcast:15 row_mask:0xa bank_mask:0xf
    s_nop 1
    v_max_f32_dpp v12, v12, v12 row_bcast:31 row_mask:0xc bank_mask:0xf
    s_nop 0
    v_readlane_b32 s35, v12, 63
    v_mov_b32 v13, 0
    s_nop 0
    v_mov_b32 v12, s35
    ds_write_b32 v213, v12 offset:{L_MAX}
    ''')
    lab = wskip()
    for _ in range(min(o['sp'][1], len(rest))):
        if o['spthr']:
            g(f's_waitcnt vmcnt({o["spthr"] - 1})')
        g(rest.pop(0))
    g(f'''
    s_waitcnt lgkmcnt(0)
    s_barrier
    {lab}
    ds_read_b128 v[176:179], v13 offset:{L_MAX}
    s_mov_b32 s35, {hex(f2u(LOG2E))}
    s_waitcnt lgkmcnt(0)
    v_max_f32 v12, v176, v177
    v_max3_f32 v12, v178, v179, v12
    v_mul_f32 v217, s35, v12
    v_fma_f32 v8, v8, s35, -v217
    v_fma_f32 v9, v9, s35, -v217
    v_fma_f32 v10, v10, s35, -v217
    v_fma_f32 v11, v11, s35, -v217
    v_exp_f32 v8, v8
    v_exp_f32 v9, v9
    v_exp_f32 v10, v10
    v_exp_f32 v11, v11
    ''')
    sprinkle(o['sp'][2])
    g(f'''
    s_nop 0
    v_add_f32 v12, v8, v9
    v_add_f32 v13, v10, v11
    v_cvt_pk_bf16_f32 v8, v8, v8
    v_add_f32 v12, v12, v13
    v_cvt_pk_bf16_f32 v9, v9, v9
    v_cvt_pk_bf16_f32 v10, v10, v10
    v_add_f32_dpp v12, v12, v12 row_ror:4 {DPPF}
    v_cvt_pk_bf16_f32 v11, v11, v11
    ''')
    thread = [f'v_add_f32_dpp v12, v12, v12 row_ror:8 {DPPF}',
              'v_add_f32_dpp v12, v12, v12 row_bcast:15 row_mask:0xa bank_mask:0xf',
              'v_add_f32_dpp v12, v12, v12 row_bcast:31 row_mask:0xc bank_mask:0xf',
              'v_readlane_b32 s35, v12, 63',
              'v_mov_b32 v12, s35',
              f'ds_write_b32 v213, v12 offset:{L_SUM}']
    for t in range(16):
        for j in range(4):
            g(f'v_and_b32_dpp v{KR + 4 * t + j}, v{8 + t // 4}, v{M4 + j} row_newbcast:{4 * (t % 4)} {DPPF}')
        if t < len(thread):
            g(thread[t])
        if t == 7:
            sprinkle((len(rest) + 1) // 2)
    sprinkle(99)
    g.stamp(6)
    for t in range(16):
        if t in (0, 4, 8):
            g(f's_waitcnt vmcnt({19 - (t + 3)})')
        elif t >= 12:
            g(f's_waitcnt vmcnt({19 - t})')
        g(mfma(OA, KR + 4 * t, VR + 4 * t, t == 0))
    g.stamp(7)
    g(f'''
    s_cmp_eq_u32 s6, 0
    v_mov_b32 v13, 0
    s_nop 5
    ds_write_b64 v207, v[{OA}:{OA + 1}]
    s_waitcnt lgkmcnt(0)
    s_barrier
    ''')
    g.stamp(11)
    g(f'''
    s_cbranch_scc0 L_pub1
    {'s_waitcnt lgkmcnt(0)' if o['diag'] else ''}
    ds_read2st64_b64 v[176:179], v207 offset0:1 offset1:2
    ds_read_b64 v[180:181], v207 offset:1536
    ds_read_b128 v[184:187], v13 offset:{L_SUM}
    v_mov_b32 v{OA + 2}, s34
    s_cmp_eq_u32 s52, {0 if o['loc'] else -1}
    s_waitcnt lgkmcnt(2)
    v_pk_add_f32 v[{OA}:{OA + 1}], v[{OA}:{OA + 1}], v[176:177]
    s_waitcnt lgkmcnt(1)
    v_pk_add_f32 v[178:179], v[178:179], v[180:181]
    s_waitcnt lgkmcnt(0)
    v_pk_add_f32 v[184:185], v[184:185], v[186:187]
    v_pk_add_f32 v[{OA}:{OA + 1}], v[{OA}:{OA + 1}], v[178:179]
    v_add_f32 v184, v184, v185
    ''')
    lab = wskip()
    g(f'''
    v_cndmask_b32 v{OA + 3}, v217, v184, s[42:43]
    s_cbranch_scc0 L_farpub
    global_store_dwordx4 v206, v[{OA}:{OA + 3}], s[32:33]
    L_pub1:
    s_cmp_eq_u32 s53, 1
    s_cbranch_scc0 L_nob
    global_load_dwordx4 v[228:231], v211, s[32:33] offset:-4096 sc1
    global_load_dwordx4 v[232:235], v211, s[32:33] sc1
    global_load_dwordx4 v[236:239], v212, s[32:33] offset:-4096 sc1
    global_load_dwordx4 v[240:243], v212, s[32:33] sc1
    L_nob:
    {'s_barrier' if o['b3b'] else ''}
    {'s_memrealtime s[64:65]' if o.get('wost') else ''}
    {'s_waitcnt vmcnt(0)' if o.get('wost') else ''}
    {'s_memrealtime s[72:73]' if o.get('wost') else ''}
    {'s_branch L_poll1' if o['sleep1'] else ''}
    L_again1:
    {f's_sleep {o["sleep1"]}' if o['sleep1'] else ''}
    L_poll1:
    global_load_dwordx4 v[176:179], v205, s[32:33] sc1
    global_load_dwordx4 v[180:183], v205, s[32:33] offset:16 sc1
    s_sub_u32 s40, s40, 1
    s_cbranch_scc1 L_end
    s_waitcnt vmcnt(0)
    v_bitop3_b32 v8, v178, v182, s34 bitop3:0x7e
    v_cmp_ne_u32 vcc, 0, v8
    ''')
    if o['shrink']:
        g('''
        s_and_b64 exec, vcc, vcc
        s_cbranch_scc1 L_again1
        s_mov_b64 exec, -1
        ''')
    else:
        g('s_cbranch_vccnz L_again1')
    g(f'''
    {lab}
    ''')
    g.stamp(8)
    if o['diag']:
        g(f's_sub_u32 s84, {SPIN}, s40')
    if o.get('pflag') == 1:
        g('s_cmp_eq_u32 s52, 0\ns_cselect_b32 s84, 0, 500\ns_waitcnt lgkmcnt(0)\ns_add_u32 s84, s84, s60')
    if o.get('pflag') == 2:
        g('s_mul_i32 s84, s84, 50\ns_waitcnt lgkmcnt(0)\ns_add_u32 s84, s84, s60')
    g(f'''
    v_max_f32_dpp v8, v179, v179 quad_perm:[1,0,3,2] {DPPF}
    s_nop 1
    v_max_f32_dpp v8, v8, v8 quad_perm:[2,3,0,1] {DPPF}
    s_nop 1
    v_max_f32_dpp v8, v8, v8 row_half_mirror {DPPF}
    v_sub_f32 v8, v179, v8
    v_exp_f32 v8, v8
    s_cmp_eq_u32 s6, 0
    v_mul_f32 v183, v8, v183
    v_pk_mul_f32 v[176:177], v[8:9], v[176:177] op_sel_hi:[0,1]
    v_pk_mul_f32 v[180:181], v[8:9], v[180:181] op_sel_hi:[0,1]
    ''')
    for ctl in ('quad_perm:[1,0,3,2]', 'quad_perm:[2,3,0,1]', 'row_half_mirror'):
        for r in (183, 176, 177, 180, 181):
            g(f'v_add_f32_dpp v{r}, v{r}, v{r} {ctl} {DPPF}')
        if ctl == 'row_half_mirror':
            g.L.insert(len(g.L) - 2, '    v_rcp_f32 v8, v183')
    src = (176, 177, 180, 181)
    g('v_pk_mul_f32 v[176:177], v[8:9], v[176:177] op_sel_hi:[0,1]')
    g('v_pk_mul_f32 v[180:181], v[8:9], v[180:181] op_sel_hi:[0,1]')
    g('v_mov_b32 v9, s34')
    for j in range(4):
        g(f'v_cvt_pk_bf16_f32 v{src[j]}, v{src[j]}, v{src[j]}')
    for j in range(5):
        if j < 4:
            for jj in range(4):
                g(f'v_and_b32 v{KR + 4 * j + jj}, v{src[j]}, v{M8 + jj}')
        else:
            g('s_nop 0')
        if j >= 1:
            g(mfma(YA, KR + 4 * (j - 1), WO + 4 * (j - 1), j == 1))
    lab = wskip()
    g(f'''
    s_nop {6 if WARM else 7}
    ds_write_b128 v208, v[{YA}:{YA + 3}]
    s_waitcnt lgkmcnt(0)
    s_barrier
    s_cbranch_scc0 L_notw0
    {lab}
    ''')
    for w in range(4):
        g(f'ds_read_b32 v{176 + 2 * w}, v209 offset:{1280 * w}')
        g(f'ds_read_b32 v{177 + 2 * w}, v209 offset:{1280 * w + 768}')
    if WARM:
        g('s_cbranch_execz L_warm2')
    g(f'''
    s_waitcnt lgkmcnt(4)
    v_pk_add_f32 v[176:177], v[176:177], v[178:179]
    s_waitcnt lgkmcnt(0)
    v_pk_add_f32 v[180:181], v[180:181], v[182:183]
    v_pk_add_f32 v[176:177], v[176:177], v[180:181]
    v_add_f32 v8, v176, v177
    global_store_dwordx2 v210, v[8:9], s[32:33] sc1
    ''')
    if o['yv'] == 2:
        g('global_store_dwordx2 v244, v[8:9], s[32:33] sc1')
    g.stamp(9)
    g.stamp_out(13, '1')
    g('s_endpgm')
    g('L_notw0:')
    g.stamp(9)
    g(f'''
    s_cmp_eq_u32 s53, 1
    s_cbranch_scc0 L_done
    L_warm2:
    ''')

    def yloads():
        g('''
        global_load_dwordx4 v[176:179], v218, s[32:33] offset:-4096 sc1
        global_load_dwordx4 v[180:183], v218, s[32:33] sc1
        global_load_dwordx4 v[184:187], v219, s[32:33] offset:-4096 sc1
        global_load_dwordx4 v[188:191], v219, s[32:33] sc1
        ''')
        if o['yv'] == 2:
            g('''
            global_load_dwordx4 v[16:19], v245, s[32:33] offset:-4096 sc1
            global_load_dwordx4 v[20:23], v245, s[32:33] sc1
            global_load_dwordx4 v[24:27], v246, s[32:33] offset:-4096 sc1
            global_load_dwordx4 v[28:31], v246, s[32:33] sc1
            ''')

    def tail(r):
        g(f'''
        v_add_f32_dpp v{r}, v{r}, v{r} row_ror:8 {DPPF}
        v_add_f32_dpp v{r + 2}, v{r + 2}, v{r + 2} row_ror:8 {DPPF}
        s_nop 1
        v_permlane16_swap_b32 v{r}, v{r + 2}
        v_add_f32 v{r}, v{r}, v{r + 2}
        v_mov_b32 v{r + 2}, v{r}
        s_nop 1
        v_permlane32_swap_b32 v{r}, v{r + 2}
        v_add_f32 v{r}, v{r}, v{r + 2}
        v_cvt_pk_bf16_f32 v{r}, v{r}, v{r}
        v_and_b32 v{r}, 0xffff0000, v{r}
        ''')

    def fold1(r, lab):
        g(f'''
        s_waitcnt vmcnt(2)
        v_bitop3_b32 v8, v{r + 1}, v{r + 3}, s34 bitop3:0x7e
        v_bitop3_b32 v9, v{r + 5}, v{r + 7}, s34 bitop3:0x7e
        s_waitcnt vmcnt(0)
        v_bitop3_b32 v10, v{r + 9}, v{r + 11}, s34 bitop3:0x7e
        v_bitop3_b32 v11, v{r + 13}, v{r + 15}, s34 bitop3:0x7e
        v_or3_b32 v8, v8, v9, v10
        v_or_b32 v8, v8, v11
        v_cmp_ne_u32 vcc, 0, v8
        s_cbranch_vccnz {lab}
        v_add_f32 v{r}, v{r}, v{r + 4}
        v_add_f32 v{r + 2}, v{r + 2}, v{r + 6}
        v_add_f32 v{r + 8}, v{r + 8}, v{r + 12}
        v_add_f32 v{r + 10}, v{r + 10}, v{r + 14}
        v_add_f32 v{r}, v{r}, v{r + 8}
        v_add_f32 v{r + 2}, v{r + 2}, v{r + 10}
        s_nop 0
        ''')
        tail(r)

    def fold2(r, q, lab):
        g('s_waitcnt vmcnt(4)')
        for i in range(4):
            g(f'v_bitop3_b32 v{8 + i}, v{r + 4 * i + 1}, v{r + 4 * i + 3}, s34 bitop3:0x7e')
        for i in range(4):
            g(f'v_cmp_eq_u32 s[{44 + 2 * i}:{45 + 2 * i}], 0, v{8 + i}')
        for i in range(4):
            g(f's_waitcnt vmcnt({3 - i})')
            g(f'v_bitop3_b32 v{12}, v{q + 4 * i + 1}, v{q + 4 * i + 3}, s34 bitop3:0x7e')
            g(f'v_cndmask_b32 v{r + 4 * i}, v{q + 4 * i}, v{r + 4 * i}, s[{44 + 2 * i}:{45 + 2 * i}]')
            g(f'v_min_u32 v{8 + i}, v{8 + i}, v12')
            g(f'v_cndmask_b32 v{r + 4 * i + 2}, v{q + 4 * i + 2}, v{r + 4 * i + 2}, s[{44 + 2 * i}:{45 + 2 * i}]')
        g(f'''
        v_or3_b32 v8, v8, v9, v10
        v_or_b32 v8, v8, v11
        v_cmp_ne_u32 vcc, 0, v8
        v_add_f32 v{r}, v{r}, v{r + 4}
        v_add_f32 v{r + 2}, v{r + 2}, v{r + 6}
        s_cbranch_vccnz {lab}
        v_add_f32 v{r + 8}, v{r + 8}, v{r + 12}
        v_add_f32 v{r + 10}, v{r + 10}, v{r + 14}
        v_add_f32 v{r}, v{r}, v{r + 8}
        v_add_f32 v{r + 2}, v{r + 2}, v{r + 10}
        s_nop 0
        ''')
        tail(r)

    def fold(r, lab, waits):
        g(f'''
        {'s_waitcnt vmcnt(2)' if waits else ''}
        v_bitop3_b32 v8, v{r + 1}, v{r + 3}, s34 bitop3:0x7e
        v_bitop3_b32 v9, v{r + 5}, v{r + 7}, s34 bitop3:0x7e
        v_add_f32 v{r}, v{r}, v{r + 4}
        v_add_f32 v{r + 2}, v{r + 2}, v{r + 6}
        {'s_waitcnt vmcnt(0)' if waits else ''}
        v_bitop3_b32 v10, v{r + 9}, v{r + 11}, s34 bitop3:0x7e
        v_bitop3_b32 v11, v{r + 13}, v{r + 15}, s34 bitop3:0x7e
        v_or3_b32 v8, v8, v9, v10
        v_or_b32 v8, v8, v11
        v_cmp_ne_u32 vcc, 0, v8
        v_add_f32 v{r + 8}, v{r + 8}, v{r + 12}
        v_add_f32 v{r + 10}, v{r + 10}, v{r + 14}
        v_add_f32 v{r}, v{r}, v{r + 8}
        v_add_f32 v{r + 2}, v{r + 2}, v{r + 10}
        s_cbranch_vccnz {lab}
        v_add_f32_dpp v{r}, v{r}, v{r} row_ror:8 {DPPF}
        v_add_f32_dpp v{r + 2}, v{r + 2}, v{r + 2} row_ror:8 {DPPF}
        s_nop 1
        v_permlane16_swap_b32 v{r}, v{r + 2}
        v_add_f32 v{r}, v{r}, v{r + 2}
        v_mov_b32 v{r + 2}, v{r}
        s_nop 1
        v_permlane32_swap_b32 v{r}, v{r + 2}
        v_add_f32 v{r}, v{r}, v{r + 2}
        v_cvt_pk_bf16_f32 v{r}, v{r}, v{r}
        v_and_b32 v{r}, 0xffff0000, v{r}
        ''')
    lab = wskip()
    yloads()
    g(lab)
    g('''
    v_lshlrev_b32 v214, 16, v214
    v_lshlrev_b32 v215, 16, v215
    L_chkb:
    ''')
    fold(228, 'L_retryb', False)
    g(f'''
    v_add_f32 v228, v228, v215
    v_cvt_pk_bf16_f32 v228, v228, v228
    v_and_b32 v228, 0xffff0000, v228
    v_mul_f32 v8, {hex(f2u(-LOG2E))}, v228
    v_exp_f32 v8, v8
    s_nop 0
    v_add_f32 v8, 1.0, v8
    v_rcp_f32 v8, v8
    s_nop 0
    v_mul_f32 v215, v228, v8
    v_cvt_pk_bf16_f32 v215, v215, v215
    v_and_b32 v215, 0xffff0000, v215
    s_branch L_chky
    L_poll2:
    ''')
    yloads()
    g('''
    s_sub_u32 s40, s40, 1
    s_cbranch_scc1 L_end
    L_chky:
    ''')
    if o['yv'] == 0:
        fold(176, 'L_poll2', True)
    elif o['yv'] == 1:
        fold1(176, 'L_poll2')
    else:
        fold2(176, 16, 'L_poll2')
    g(f'''
    v_mul_f32 v176, v176, v215
    v_cvt_pk_bf16_f32 v176, v176, v176
    v_and_b32 v176, 0xffff0000, v176
    v_add_f32 v176, v176, v214
    {'s_cbranch_execz L_warm3' if WARM else ''}
    v_cvt_pk_bf16_f32 v176, v176, v176
    s_mov_b64 exec, 0x00ff00ff
    global_store_short v204, v176, s[28:29] {o['outf']}
    s_cmp_eq_u32 s2, 0
    s_cbranch_scc0 L_done
    v_mov_b32 v8, 0
    v_mov_b32 v9, s34
    s_mov_b64 exec, 1
    global_store_dword v8, v9, s[32:33] {o.get('epf', '')}
    L_done:
    ''')
    g.stamp(10)
    if o['diag']:
        g('s_add_u32 s6, s6, 1')
    g.stamp_out(13, 's6')
    if o['probe']:
        probe(g, o)
    g(f'''
    L_end:
    s_endpgm
    L_retryb:
    global_load_dwordx4 v[228:231], v211, s[32:33] offset:-4096 sc1
    global_load_dwordx4 v[232:235], v211, s[32:33] sc1
    global_load_dwordx4 v[236:239], v212, s[32:33] offset:-4096 sc1
    global_load_dwordx4 v[240:243], v212, s[32:33] sc1
    s_sub_u32 s40, s40, 1
    s_cbranch_scc1 L_end
    s_waitcnt vmcnt(0)
    s_branch L_chkb
    L_farpub:
    global_store_dwordx4 v206, v[{OA}:{OA + 3}], s[32:33] sc1
    s_branch L_pub1
    ''')


def probe(g, o):
    wv, idx, kind, K = o['probe']
    mm = 'v_max_u32' if kind == 'max' else 'v_min_u32'
    g(f'''
    s_cmp_eq_u32 s2, 0
    s_cbranch_scc0 L_end
    s_cmp_eq_u32 s6, 2
    s_cbranch_scc0 L_end
    s_mov_b64 exec, -1
    s_memrealtime s[50:51]
    s_waitcnt lgkmcnt(0)
    L_pw:
    s_memrealtime s[52:53]
    s_waitcnt lgkmcnt(0)
    s_sub_u32 s52, s52, s50
    s_cmp_lt_u32 s52, 300
    s_cbranch_scc1 L_pw
    v_lshlrev_b32 v2, 10, v1
    v_add_u32 v2, {WS_ST}, v2
    ''')
    for i in range(4):
        g(f'global_load_dword v{8 + i}, v2, s[32:33] sc1')
        g(f'global_load_dword v{12 + i}, v2, s[32:33] offset:{wv * 128 + idx * 4} sc1')
        g('v_add_u32 v2, 0x10000, v2')
    g(f'''
    s_waitcnt vmcnt(0)
    v_min_u32 v8, v8, v9
    v_min_u32 v10, v10, v11
    v_min_u32 v8, v8, v10
    {mm} v12, v12, v13
    {mm} v14, v14, v15
    {mm} v12, v12, v14
    ''')
    wave_sum(g, ['v8'], 'v_min_u32')
    wave_sum(g, ['v12'], mm)
    g(f'''
    s_nop 1
    v_readlane_b32 s52, v8, 63
    v_readlane_b32 s53, v12, 63
    s_nop 3
    s_sub_u32 s54, s53, s52
    s_min_u32 s54, s54, 3000
    s_mul_i32 s54, s54, {K}
    s_add_u32 s54, s54, 400
    L_pw2:
    s_memrealtime s[52:53]
    s_waitcnt lgkmcnt(0)
    s_sub_u32 s52, s52, s50
    s_cmp_lt_u32 s52, s54
    s_cbranch_scc1 L_pw2
    ''')


def gen_aux(g, o):
    WNT = 'nt' if o['wnt'] else ''
    WARM = o['warm']
    WQ = 16; W1 = 80; W2 = 144; E = [f'v{168 + i}' for i in range(8)]; AS = (176, 180); QA = 184; ZA = 188
    g(f'''
    L_aux:
    s_setprio 3
    {'s_lshr_b32 s58, s2, 3' if o['qlin'] else 's_mov_b32 s58, s4'}
    {'s_and_b32 s59, s2, 7' if o['qlin'] else 's_mov_b32 s59, s5'}
    v_and_b32 v2, 15, v1
    v_lshrrev_b32 v3, 4, v1
    v_lshlrev_b32 v10, 4, v1
    s_lshl_b32 s6, s59, 7
    v_lshlrev_b32 v11, 1, v3
    v_lshl_or_b32 v11, v2, 3, v11
    v_add_u32 v8, s6, v11
    s_lshl_b32 s7, s59, 19
    s_lshl_b32 s35, s58, 8
    s_add_u32 s7, s7, s35
    v_lshlrev_b32 v12, 4, v2
    v_lshl_or_b32 v13, v3, 13, v12
    v_add_u32 v{WQ}, s7, v13
    s_mov_b32 s38, 0x8000
    ''')
    if o.get('st8'): g.stamp(8)
    g('s_waitcnt lgkmcnt(0)')
    g.stamp(1)
    g('''
    global_load_dwordx4 v[4:7], v10, s[8:9]
    global_load_ushort v8, v8, s[8:9]
    s_load_dword s34, s[32:33], 0
    ''')
    for t in range(16):
        r = WQ + 4 * t
        if t < 15:
            g(f'v_add_u32 v{r + 4}, s38, v{r}')
        g(f'global_load_dwordx4 v[{r}:{r + 3}], v{r}, s[14:15] {WNT}')
    g(f'''
    ''')
    if o['qlin']:
        g(f'''
        s_mul_i32 s35, s58, 43
        s_lshr_b32 s35, s35, 3
        s_lshl_b32 s35, s35, 4
        s_mul_i32 s7, s59, {64 * 2752}
        s_add_u32 s7, s7, s35
        s_mul_i32 s36, s4, 43
        s_add_u32 s37, s36, 43
        s_lshr_b32 s36, s36, 3
        s_lshr_b32 s37, s37, 3
        s_sub_u32 s37, s37, s36
        s_lshl_b32 s35, s36, 4
        s_lshl_b32 s6, s5, 7
        ''')
    else:
        g(f'''
    s_and_b32 s36, s4, 7
    s_lshr_b32 s37, s4, 3
    s_lshl2_add_u32 s36, s36, s37
    s_mul_i32 s36, s36, 43
    s_add_u32 s37, s36, 43
    s_lshr_b32 s36, s36, 3
    s_lshr_b32 s37, s37, 3
    s_sub_u32 s37, s37, s36
    s_mul_i32 s7, s5, {64 * 2752}
    s_lshl_b32 s35, s36, 4
    s_add_u32 s7, s7, s35
        ''')
    g(f'''
    v_mul_u32_u24 v13, 2752, v3
    v_add3_u32 v{W1}, v13, v12, s7
    v_lshl_or_b32 v203, v3, 2, v12
    ''')
    if o['mergez']:
        g('''
        v_and_b32 v9, 7, v2
        v_min_u32 v9, 5, v9
        v_lshlrev_b32 v9, 4, v9
        v_lshl_or_b32 v9, v3, 2, v9
        v_lshrrev_b32 v13, 3, v2
        v_lshl_or_b32 v9, v13, 1, v9
        v_add_u32 v9, s35, v9
        ''')
    else:
        g('v_add_u32 v9, s35, v203')
    g(f'''
    s_lshl_b32 s7, s36, 13
    s_add_u32 s7, s7, s6
    v_lshrrev_b32 v13, 3, v2
    v_lshl_or_b32 v13, v3, 1, v13
    v_lshlrev_b32 v13, 10, v13
    v_and_b32 v14, 7, v2
    v_lshl_or_b32 v13, v14, 4, v13
    v_add_u32 v{W2}, s7, v13
    s_movk_i32 s38, 11008
    s_movk_i32 s39, 8192
    s_mov_b32 s54, 0x003f003f
    s_mov_b32 s55, s54
    s_mov_b64 exec, s[54:55]
    ''')
    for t in range(16):
        r = W1 + 4 * t
        if t < 15:
            g(f'v_add_u32 v{r + 4}, s38, v{r}')
        g(f'global_load_dwordx4 v[{r}:{r + 3}], v{r}, s[20:21] {WNT}')
    if o['mergez']:
        g('s_mov_b64 exec, -1')
        g('global_load_ushort v9, v9, s[22:23]')
    else:
        g('global_load_dword v9, v9, s[22:23]')
        g('s_mov_b64 exec, -1')
    for t in range(6):
        r = W2 + 4 * t
        if t < 5:
            g(f'v_add_u32 v{r + 4}, s39, v{r}')
        if t == 5 and o['w2skip']:
            g(f'''
            s_cmp_eq_u32 s37, 5
            s_cselect_b64 exec, 1, -1
            s_cselect_b32 s39, s39, 0
            v_subrev_u32 v{r}, s39, v{r}
            global_load_dwordx4 v[{r}:{r + 3}], v{r}, s[24:25] {WNT}
            s_mov_b64 exec, -1
            ''')
        else:
            g(f'global_load_dwordx4 v[{r}:{r + 3}], v{r}, s[24:25] {WNT}')
    if o['sbpos'] == 'issue' or o['pure'] == 1:
        g('s_barrier')
    g.stamp(2)
    if o['pure'] == 1:
        g('s_waitcnt vmcnt(0)')
        for i in range(3, 10): g.stamp(i)
        g('s_getreg_b32 s80, hwreg(HW_REG_HW_ID)')
        g.stamp_out(11, '0')
        g('s_endpgm')
    masks(g, M4, M8, 'v13', 'v14')
    g(f'''
    s_lshl_b32 s7, s58, 13
    s_lshl_b32 s35, s59, 10
    s_add_u32 s35, s35, s7
    s_add_u32 s35, s35, {WS_Q}
    v_add_u32 v200, s35, v10
    s_lshl_b32 s7, s4, 6
    s_add_u32 s7, s7, {WS_X}
    v_and_b32 v13, 7, v1
    v_lshl_add_u32 v206, v13, 3, s7
    s_lshl3_add_u32 s7, s5, s7
    v_mov_b32 v207, s7
    s_lshl_b32 s7, s4, 13
    s_add_u32 s7, s7, {WS_Q + 4096}
    v_add_u32 v201, s7, v10
    v_add_u32 v202, {hex(WS_Z - WS_Q)}, v201
    v_add_u32 v205, {hex(WS_Z - WS_Q)}, v200
    s_lshl_b32 s7, s5, 5
    s_add_u32 s7, s7, s4
    s_lshl_b32 s7, s7, 9
    s_add_u32 s7, s7, {WS_B}
    v_and_b32 v13, 1, v3
    v_lshlrev_b32 v13, 5, v13
    v_lshl_or_b32 v13, v2, 6, v13
    v_lshrrev_b32 v14, 1, v3
    v_lshl_or_b32 v13, v14, 3, v13
    v_add_u32 v204, s7, v13
    v_and_b32 v13, 3, v1
    v_lshlrev_b32 v13, 2, v13
    v_mov_b32 v14, 0
    ds_write_b32 v13, v14 offset:{L_ZERO}
    s_mov_b32 s40, {SPIN}
    s_getreg_b32 s39, hwreg(HW_REG_XCC_ID, 0, 4)
    s_waitcnt vmcnt(39)
    ''')
    g.stamp(3)
    for i in range(4):
        g(f'v_lshlrev_b32 {E[2 * i]}, 16, v{4 + i}')
        g(f'v_and_b32 {E[2 * i + 1]}, 0xffff0000, v{4 + i}')
    g('v_lshlrev_b32 v8, 16, v8')

    def normalise_own():
        layernorm_stats(g, E, 'v4', 'v5', 's35', 'v6', 'v7')
        g('v_sub_f32 v8, v8, v6')
        bf_round(g, 'v8', 'v8')
        g('v_mul_f32 v8, v8, v7')
        g('v_cvt_pk_bf16_f32 v8, v8, v8')
        g('s_nop 1')

    def gemv16(src, base, acc, vm0, bar=None):
        for t in range(17):
            if t < 16:
                for j in range(4):
                    g(f'v_and_b32_dpp v{AS[t % 2] + j}, {src}, v{M4 + j} row_newbcast:{t} {DPPF}')
            else:
                g('s_nop 1')
            if t >= 1:
                k = t - 1
                if k % 4 == 0 and k < 12:
                    g(f's_waitcnt vmcnt({vm0 - (k + 3)})')
                elif k >= 12:
                    g(f's_waitcnt vmcnt({vm0 - k})')
                if k == bar:
                    g('s_barrier')
                g(mfma(acc, AS[k % 2], base + 4 * k, k == 0))
    if o['sbpos'] == 'x':
        g('s_barrier')
    normalise_own()
    gemv16('v8', WQ, QA, 38, o['sbpos'] if isinstance(o['sbpos'], int) else None)
    for i in range(8):
        g(f'v_sub_f32 {E[i]}, {E[i]}, v6')
    if not o['mergez']:
        g(f'''
        s_waitcnt lgkmcnt(0)
        s_add_u32 s34, s34, 0x01010101
        v_mov_b32 v{QA + 2}, s34
        v_mov_b32 v{QA + 3}, s39
        {'global_load_dword v14, v10, s[8:9]' if 's' in o['skip'] else f'global_store_dwordx4 v200, v[{QA}:{QA + 3}], s[32:33] sc1'}
        ''')
    g.stamp(4)
    for i in range(8):
        bf_round(g, E[i], E[i])
    for i in range(8):
        g(f'v_mul_f32 {E[i]}, {E[i]}, v7')
    for i in range(8):
        bf_round(g, E[i], E[i])
    g('v_and_b32 v8, 0xffff0000, v8')
    normalise_own()
    gemv16('v8', W1, ZA, 22 if o['mergez'] else 23)
    if o['mergez']:
        g(f'''
        s_waitcnt lgkmcnt(0)
        s_add_u32 s34, s34, 0x01010101
        v_mov_b32 v{QA + 3}, s39
        v_mov_b32 v{QA + 2}, s34
        s_mov_b32 s56, 0x3f3f3f3f
        s_mov_b32 s57, s56
        s_nop 1
        v_mov_b32_dpp v{ZA}, v{ZA + 1} row_ror:8 row_mask:0xf bank_mask:0xc
        v_cndmask_b32 v{QA + 3}, v{QA + 3}, v{ZA}, s[56:57]
        {'' if 's' in o['skip'] else f'global_store_dwordx4 v200, v[{QA}:{QA + 3}], s[32:33] sc1'}
        ''')
        if o['qlin']:
            g(f'''
            v_mov_b32 v12, s39
            v_mov_b32 v13, s34
            s_mov_b64 exec, 1
            global_store_dwordx2 v207, v[12:13], s[32:33] sc1
            s_mov_b64 exec, -1
            ''')
    else:
        g(f'''
        s_nop 7
        v_mov_b32 v{ZA + 2}, s34
        v_mov_b32 v{ZA + 3}, s34
        s_mov_b64 exec, s[54:55]
        {'' if 's' in o['skip'] else f'global_store_dwordx4 v205, v[{ZA}:{ZA + 3}], s[32:33] sc1'}
        ''')
    if o['prew']:
        g(f'''
        s_lshl_b32 s7, s4, 3
        s_add_u32 s7, s7, s5
        s_lshl_b32 s7, s7, 10
        s_add_u32 s7, s7, {WS_O}
        v_add_u32 v14, s7, v10
        v_not_b32 v{ZA + 2}, v{QA + 2}
        global_store_dwordx4 v14, v[{ZA}:{ZA + 3}], s[32:33]
        ''')
    g.stamp(5)
    g('s_barrier')
    g.stamp(6)
    ZP = 48; QP = 16

    def polls(base, addr, n):
        if 'p' in o['skip']: return
        for p in range(8):
            g(f'global_load_dwordx{n} v[{base + 4 * p}:{base + 4 * p + n - 1}], {addr}, s[32:33] offset:{1024 * p - 4096} sc1')

    def alleq(base, word, sreg):
        for p in range(4):
            g(f'v_bitop3_b32 v{10 + p}, v{base + 8 * p + word}, v{base + 8 * p + 4 + word}, {sreg} bitop3:0x7e')
        g('v_or3_b32 v10, v10, v11, v12')
        g('v_or_b32 v10, v10, v13')

    def sum8(base):
        for st in (1, 2, 4):
            for p in range(0, 8, 2 * st):
                a = base + 4 * p; b = base + 4 * (p + st)
                g(f'v_pk_add_f32 v[{a}:{a + 1}], v[{a}:{a + 1}], v[{b}:{b + 1}]')
    if o['ytouch'] and o['ytaux']:
        g(f'''
        s_lshr_b32 s35, s4, 2
        s_cmp_eq_u32 s35, s5
        s_cbranch_scc0 L_pollq
        s_lshl_b32 s35, s5, 14
        s_and_b32 s7, s4, 3
        s_lshl_b32 s7, s7, 7
        s_add_u32 s35, s35, s7
        s_add_u32 s35, s35, {WS_Y}
        v_and_b32 v14, 31, v1
        v_lshl_add_u32 v14, v14, 9, s35
        global_load_dword v14, v14, s[32:33]
        ''')
    g('L_pollq:')
    if not o['mergez']:
        g('s_mov_b64 exec, s[54:55]')
        polls(ZP, 'v202', 3)
        g('s_mov_b64 exec, -1')
    polls(QP, 'v201', 4)
    if o['qlin'] and 'p' not in o['skip']:
        g('global_load_dwordx2 v[48:49], v206, s[32:33] sc1')
    g('''
    s_sub_u32 s40, s40, 1
    s_cbranch_scc1 L_end
    s_waitcnt vmcnt(0)
    L_warm3:
    ''')
    alleq(QP, 2, 's34')
    if o['qlin']:
        g('v_xor_b32 v11, s34, v49')
        g('v_or_b32 v10, v10, v11')
    g('v_cmp_ne_u32 vcc, 0, v10')
    if 'p' not in o['skip']: g('s_cbranch_vccnz L_pollq')
    sum8(QP)
    g(f'''
    v_cvt_pk_bf16_f32 v{QP}, v{QP}, v{QP + 1}
    ds_write_b32 v203, v{QP} offset:{L_Q}
    ''')
    if o['qlin']:
        g('''
        v_cmp_ne_u32 vcc, s39, v48
        s_cmp_lg_u64 vcc, 0
        s_cselect_b32 s35, 1, 0
        v_mov_b32 v10, s35
        ''')
    else:
        alleq(QP, 3, 's39')
    if o['mergez'] and not o['qlin']:
        g('s_nop 1')
        g(f'v_mov_b32_dpp v10, v10 row_newbcast:15 {DPPF}')
    if o['diag']:
        g(f's_sub_u32 s80, {SPIN}, s40')
    g(f'''
    v_mov_b32 v11, 0
    ds_write_b32 v11, v10 offset:{L_FLAG}
    {'s_cbranch_execz L_chkz' if WARM else ''}
    s_waitcnt lgkmcnt(0)
    ''')
    g.stamp(7)
    if o['pure'] == 2:
        for i in range(8, 10): g.stamp(i)
        g.stamp_out(11, '0')
        g('s_endpgm')
    g('''
    s_barrier
    s_barrier
    L_chkz:
    ''')
    k0 = hex(f2u(0.044715)); k1 = hex(f2u(-2.0 * 0.7978845608028654 * LOG2E))
    if o['mergez']:
        if not o.get('st8'): g.stamp(8)
        for st in (1, 2, 4):
            for p in range(0, 8, 2 * st):
                g(f'v_add_f32 v{QP + 4 * p + 3}, v{QP + 4 * p + 3}, v{QP + 4 * (p + st) + 3}')
        z = f'v{QP + 3}'
        bf_round(g, z, z)
        g(f'''
        v_lshlrev_b32 v9, 16, v9
        v_add_f32 {z}, {z}, v9
        ''')
        bf_round(g, z, z)
        g(f'''
        v_mul_f32 v10, {z}, {z}
        v_mul_f32 v10, v10, {z}
        v_fmamk_f32 v10, v10, {k0}, {z}
        v_mul_f32 v10, {k1}, v10
        v_exp_f32 v10, v10
        s_nop 0
        v_add_f32 v10, 1.0, v10
        v_rcp_f32 v10, v10
        s_nop 0
        v_mul_f32 v10, v10, {z}
        v_cvt_pk_bf16_f32 v10, v10, v10
        s_nop 1
        ''')
    else:
        alleq(ZP, 2, 's34')
        g('''
        v_cmp_ne_u32 vcc, 0, v10
        s_and_b64 vcc, vcc, s[54:55]
        ''')
        if 'p' not in o['skip']: g('s_cbranch_vccnz L_retryz')
        g.stamp(8)
        sum8(ZP)
        z0, z1 = f'v{ZP}', f'v{ZP + 1}'
        k0 = hex(f2u(0.044715)); k1 = hex(f2u(-2.0 * 0.7978845608028654 * LOG2E))
        g(f'''
        v_cvt_pk_bf16_f32 {z0}, {z0}, {z1}
        v_lshlrev_b32 v10, 16, v9
        v_and_b32 v11, 0xffff0000, v9
        v_and_b32 {z1}, 0xffff0000, {z0}
        v_lshlrev_b32 {z0}, 16, {z0}
        v_add_f32 {z0}, {z0}, v10
        v_add_f32 {z1}, {z1}, v11
        v_cvt_pk_bf16_f32 {z0}, {z0}, {z1}
        v_and_b32 {z1}, 0xffff0000, {z0}
        v_lshlrev_b32 {z0}, 16, {z0}
        v_mul_f32 v10, {z0}, {z0}
        v_mul_f32 v11, {z1}, {z1}
        v_mul_f32 v10, v10, {z0}
        v_mul_f32 v11, v11, {z1}
        v_fmamk_f32 v10, v10, {k0}, {z0}
        v_fmamk_f32 v11, v11, {k0}, {z1}
        v_mul_f32 v10, {k1}, v10
        v_mul_f32 v11, {k1}, v11
        v_exp_f32 v10, v10
        v_exp_f32 v11, v11
        s_nop 0
        v_add_f32 v10, 1.0, v10
        v_add_f32 v11, 1.0, v11
        v_rcp_f32 v10, v10
        v_rcp_f32 v11, v11
        s_nop 0
        v_mul_f32 v10, v10, {z0}
        v_mul_f32 v11, v11, {z1}
        v_cvt_pk_bf16_f32 v10, v10, v10
        v_cvt_pk_bf16_f32 v11, v11, v11
        s_nop 1
        ''')
    BA = 184
    for jj in range(6):
        if jj == 5:
            g('s_cmp_eq_u32 s37, 5')
            g('s_cbranch_scc1 L_five')
        a = AS[jj % 2]
        g(f'v_mov_b32_dpp v12, v10 row_newbcast:{jj} row_mask:0xf bank_mask:0x3')
        if o['mergez']:
            g(f'v_mov_b32_dpp v12, v10 row_newbcast:{jj + 8} row_mask:0xf bank_mask:0xc')
        else:
            g(f'v_mov_b32_dpp v12, v11 row_newbcast:{jj} row_mask:0xf bank_mask:0xc')
        for j in range(4):
            g(f'v_and_b32 v{a + j}, v12, v{M8 + j}')
        g('s_nop 1')
        g(mfma(BA, a, W2 + 4 * jj, jj == 0))
    g(f'''
    L_five:
    s_nop 7
    v_permlane32_swap_b32 v{BA}, v{BA + 1}
    v_permlane32_swap_b32 v{BA + 2}, v{BA + 3}
    v_mov_b32 v11, s34
    v_mov_b32 v13, s34
    v_add_f32_dpp v10, v{BA + 1}, v{BA} row_ror:8 {DPPF}
    v_add_f32_dpp v12, v{BA + 3}, v{BA + 2} row_ror:8 {DPPF}
    {'s_cbranch_execz L_wend' if WARM else ''}
    s_mov_b32 exec_lo, 0x00ff00ff
    s_mov_b32 exec_hi, 0x00ff00ff
    global_store_dwordx2 v204, v[10:11], s[32:33] sc1
    global_store_dwordx2 v204, v[12:13], s[32:33] offset:16 sc1
    ''')
    g.stamp(9)
    g('s_barrier')
    if o['b3b']:
        g('s_barrier')
    g('s_barrier')
    g.stamp_out(11, '0')
    g('s_endpgm')
    if not o['mergez']:
        g('''
        L_retryz:
        s_sub_u32 s40, s40, 1
        s_cbranch_scc1 L_end
        s_mov_b64 exec, s[54:55]
        ''')
        polls(ZP, 'v202', 3)
        g('''
        s_mov_b64 exec, -1
        s_waitcnt vmcnt(0)
        s_branch L_chkz
        ''')
    if WARM:
        g('L_wend:')
        if o.get('wdiag'):
            g.stamp(1)
            g.stamp_out(2, '5')
        g('s_endpgm')


def gen(opt):
    o = dict(DEFAULTS); o.update(opt)
    if o['pure']:
        o['warm'] = min(o['warm'], 1)
    g = G(o)
    g.stamp(0)
    g('''
    s_load_dwordx16 s[8:23], s[0:1], 0
    s_load_dwordx8 s[24:31], s[0:1], 64
    s_load_dwordx2 s[32:33], s[0:1], 96
    v_readfirstlane_b32 s3, v0
    s_cmp_ge_u32 s2, 256
    s_cbranch_scc1 L_end
    ''')
    if o['lin']:
        g('s_lshr_b32 s4, s2, 3\ns_and_b32 s5, s2, 7')
    else:
        g('s_and_b32 s4, s2, 31\ns_lshr_b32 s5, s2, 5')
    g('''
    v_and_b32 v1, 63, v0
    s_cmp_lt_u32 s3, 64
    s_cbranch_scc1 L_aux
    s_cmp_lt_u32 s3, 320
    s_cbranch_scc1 L_stream
    ''')
    if o['cpfsplit']:
        g('''
        s_getpc_b64 s[36:37]
        L_pc:
        s_bfe_u32 s35, s2, 0x30003
        s_mul_i32 s35, s35, 1280
        v_lshl_add_u32 v2, v1, 7, s35
        v_min_u32 v2, L_codeend-L_pc-4, v2
        s_mov_b64 exec, 0x3ff
        global_load_dword v2, v2, s[36:37]
        s_barrier
        ''')
    else:
        g('''
        s_getpc_b64 s[36:37]
        L_pc:
        v_lshlrev_b32 v2, 7, v1
        v_add_u32 v3, 0x2000, v2
        v_min_u32 v2, L_codeend-L_pc-4, v2
        v_min_u32 v3, L_codeend-L_pc-4, v3
        global_load_dword v2, v2, s[36:37]
        global_load_dword v3, v3, s[36:37]
        s_barrier
        ''')
    if o['warm'] and not o['pure']:
        g('''
        s_mov_b32 s6, 0
        s_mov_b64 s[54:55], 0
        s_waitcnt vmcnt(0) lgkmcnt(0)
        s_mov_b64 exec, 0
        s_branch L_warm1
        ''')
    else:
        g('s_endpgm')
    pro = g.take()
    gen_aux(g, o)
    aux = g.take()
    gen_stream(g, o)
    strm = g.take()
    body = pro + aux + strm + ['L_codeend:']
    head = open('recurrent_scan__sliding_block_cached__mixer_channel_mlp__decode.s.ref').read().split('; Override launch')[0]
    return head + f'''; One workgroup per (head, 256-key split): wave 0 = projection / MLP helper, waves 1-4 stream K and V, wave 5 = code warm-up.
; @launch grid=(256,1,1) block=(384,1,1) lds={LDS_BYTES}
.amdgcn_target "amdgcn-amd-amdhsa--gfx950"
.text
.globl {KN}
.p2align 8
.type {KN},@function
{KN}:
''' + '\n'.join(body) + f'''
.section .rodata,"a"
.p2align 6
.amdhsa_kernel {KN}
  .amdhsa_next_free_vgpr 248
  .amdhsa_next_free_sgpr 96
  .amdhsa_accum_offset 248
  .amdhsa_group_segment_fixed_size 0
  .amdhsa_kernarg_size 104
  .amdhsa_user_sgpr_count 2
  .amdhsa_user_sgpr_kernarg_segment_ptr 1
  .amdhsa_system_sgpr_workgroup_id_x 1
  .amdhsa_float_denorm_mode_32 3
.end_amdhsa_kernel
'''


if __name__ == '__main__':
    out = sys.argv[1]
    opt = eval(sys.argv[2]) if len(sys.argv) > 2 else {}
    open(out, 'w').write(gen(opt))
```

```python
import sys, struct

KN = 'recurrent_scan__sliding_block_cached__mixer_channel_mlp__decode_kernel'

def f2u(x):
    return struct.unpack('<I', struct.pack('<f', x))[0]

LOG2E = 1.4426950408889634
WS_Q = 0x10000
WS_Z = 0x60000
WS_O = 0xB0000
WS_Y = 0x100000
WS_B = 0x140000
WS_X = 0x8000
WS_ST = 0x200000
L_Q = 0; L_ZERO = 256; L_MAX = 272; L_SUM = 288; L_FLAG = 304; L_O = 512; L_Y = 2560; LDS_BYTES = 8192
DPPF = 'row_mask:0xf bank_mask:0xf'
SPIN = 100000

DEFAULTS = dict(diag=0, nt=1, wnt=1, warm=1, loc=1, b0=4.5, b1=3, sched=(8, 8, 0, 1), thr2=12, sp=(2, 2, 3), gap=1, b3b=1,
                pure=0, five=0, blate=1, ogm=1, par=(6, 6, 8, 12, 5), cpfsplit=1, ytaux=0, w2skip=1, yv=1, sbpos='issue', prew=0, kvmap=0, qlin=1, mergez=1, shrink=1, sleep1=0, skip='', ytouch=4, probe=None, lin=0, outf='', map=0, spthr=0)


class G:
    def __init__(self, opt):
        self.L = []
        self.o = opt

    def __call__(self, s):
        for line in s.strip('\n').split('\n'):
            line = line.strip()
            if not line:
                continue
            self.L.append(line if line.endswith(':') else '    ' + line)

    def take(self):
        L, self.L = self.L, []
        return L

    def stamp(self, i):
        if self.o['diag']:
            self(f's_memrealtime s[{60 + 2 * i}:{61 + 2 * i}]')

    def stamp_out(self, n, wave):
        if not self.o['diag']:
            return
        self(f'''
        s_waitcnt lgkmcnt(0)
        s_lshl_b32 s41, s2, 3
        s_add_u32 s41, s41, {wave}
        s_lshl_b32 s41, s41, 7
        s_add_u32 s41, s41, {WS_ST}
        s_mov_b64 exec, 0xffff
        v_lshl_add_u32 v2, v1, 2, s41
        ''')
        for i in range(n):
            self(f'v_writelane_b32 v3, s{60 + 2 * i}, {i}')
        self('global_store_dword v2, v3, s[32:33]')


def wave_sum(g, regs, op='v_add_f32'):
    pad = max(0, 2 - (len(regs) - 1))
    for ctl in ('row_ror:1 ' + DPPF, 'row_ror:2 ' + DPPF, 'row_ror:4 ' + DPPF, 'row_ror:8 ' + DPPF,
                'row_bcast:15 row_mask:0xa bank_mask:0xf', 'row_bcast:31 row_mask:0xc bank_mask:0xf'):
        if pad:
            g(f's_nop {pad - 1}')
        for r in regs:
            g(f'{op}_dpp {r}, {r}, {r} {ctl}')


def bf_round(g, dst, src):
    g(f'v_cvt_pk_bf16_f32 {dst}, {src}, {src}')
    g(f'v_and_b32 {dst}, 0xffff0000, {dst}')


def layernorm_stats(g, e, t0, t1, smean, vmeanb, vrinv):
    g(f'''
    v_add_f32 {t0}, {e[0]}, {e[1]}
    v_add_f32 {t1}, {e[2]}, {e[3]}
    v_add_f32 {t0}, {t0}, {e[4]}
    v_add_f32 {t1}, {t1}, {e[5]}
    v_add_f32 {t0}, {t0}, {e[6]}
    v_add_f32 {t1}, {t1}, {e[7]}
    v_add_f32 {t0}, {t0}, {t1}
    ''')
    wave_sum(g, [t0])
    g(f'''
    v_mul_f32 {t0}, {hex(f2u(1.0 / 512))}, {t0}
    s_nop 0
    v_readlane_b32 {smean}, {t0}, 63
    s_nop 1
    v_subrev_f32 {t0}, {smean}, {e[0]}
    v_subrev_f32 {vmeanb}, {smean}, {e[1]}
    v_mul_f32 {t0}, {t0}, {t0}
    v_mul_f32 {t1}, {vmeanb}, {vmeanb}
    ''')
    for i in range(2, 8, 2):
        g(f'''
        v_subrev_f32 {vrinv}, {smean}, {e[i]}
        v_subrev_f32 {vmeanb}, {smean}, {e[i + 1]}
        v_fmac_f32 {t0}, {vrinv}, {vrinv}
        v_fmac_f32 {t1}, {vmeanb}, {vmeanb}
        ''')
    g(f'v_add_f32 {t0}, {t0}, {t1}')
    g(f'v_mov_b32 {vmeanb}, {smean}')
    wave_sum(g, [t0])
    g(f'v_mul_f32 {t0}, {hex(f2u(1.0 / 512))}, {t0}')
    bf_round(g, vmeanb, vmeanb)
    g(f'v_readlane_b32 {smean}, {t0}, 63')
    g('s_nop 1')
    g(f'v_mov_b32 {t0}, {smean}')
    bf_round(g, t0, t0)
    g(f'v_add_f32 {t0}, {hex(f2u(1e-5))}, {t0}')
    bf_round(g, t0, t0)
    g(f'v_sqrt_f32 {t0}, {t0}')
    g('s_nop 0')
    bf_round(g, t0, t0)
    g(f'v_rcp_f32 {vrinv}, {t0}')
    g('s_nop 0')


def masks(g, M4, M8, t0, t1):
    g(f'''
    v_and_b32 {t0}, 1, v1
    v_lshlrev_b32 {t0}, 4, {t0}
    v_mov_b32 {t1}, 0xffff
    v_lshlrev_b32 {t0}, {t0}, {t1}
    v_bfe_u32 {t1}, v1, 1, 2
    ''')
    for j in range(4):
        g(f'v_cmp_eq_u32 s[{44 + 2 * j}:{45 + 2 * j}], {j}, {t1}')
        g(f'v_mov_b32 v{M4 + j}, 0')
    for j in range(4):
        g(f'v_mov_b32_dpp v{M4 + j}, {t0} quad_perm:[0,1,2,3] row_mask:0xf bank_mask:{hex(1 << j)}')
        g(f'v_cndmask_b32 v{M8 + j}, 0, {t0}, s[{44 + 2 * j}:{45 + 2 * j}]')


def mfma(d, a, b, first):
    c = '0' if first else f'v[{d}:{d + 3}]'
    return f'v_mfma_f32_16x16x32_bf16 v[{d}:{d + 3}], v[{a}:{a + 3}], v[{b}:{b + 3}], {c}'


M4 = 192; M8 = 196


def gen_stream(g, o):
    NT = o['nt'] if isinstance(o['nt'], str) else ('nt' if o['nt'] else '')
    WNT = o['wnt'] if isinstance(o['wnt'], str) else ('nt' if o['wnt'] else '')
    WARM = o['warm']
    KR = 16; VR = 80; WO = 144; QB = 160; DT = 176; OA = 220; YA = 224
    nskip = [0]

    def wskip():
        if not WARM:
            return ''
        nskip[0] += 1
        g(f's_cbranch_execz L_ws{nskip[0]}')
        return f'L_ws{nskip[0]}:'
    g(f'''
    L_stream:
    ''')
    KV = o['kvmap']
    if KV == 0:
        TSH = 12
        g('''
        s_lshl_b32 s7, s4, 21
        s_lshl_b32 s35, s5, 16
        s_add_u32 s7, s7, s35
        s_lshl_b32 s35, s3, 8
        s_add_u32 s7, s7, s35
        s_and_b32 s35, s2, 24
        s_lshl_b32 s35, s35, 9
        s_add_u32 s7, s7, s35
        s_add_u32 s7, s7, 0x17c000
        ''')
    elif KV in (1, 2):
        TSH = 17
        g('''
        s_lshl_b32 s7, s4, 21
        s_lshl_b32 s35, s5, 14
        s_add_u32 s7, s7, s35
        s_lshl_b32 s35, s3, 6
        s_add_u32 s7, s7, s35
        s_add_u32 s7, s7, 0x17f000
        ''')
        if KV == 2:
            g('s_and_b32 s35, s2, 24\ns_lshl_b32 s35, s35, 14\ns_add_u32 s7, s7, s35')
    elif KV in (3, 4):
        TSH = 14
        g('''
        s_lshl_b32 s7, s4, 21
        s_lshl_b32 s35, s5, 16
        s_add_u32 s7, s7, s35
        s_lshl_b32 s35, s3, 6
        s_add_u32 s7, s7, s35
        s_add_u32 s7, s7, 0x17f000
        ''')
        if KV == 3:
            g('s_and_b32 s35, s2, 24\ns_lshl_b32 s35, s35, 11\ns_add_u32 s7, s7, s35')
        else:
            g('s_and_b32 s35, s5, 3\ns_lshl_b32 s35, s35, 14\ns_add_u32 s7, s7, s35')
    g(f'''
    v_lshlrev_b32 v2, 4, v1
    v_and_b32 v3, 0x30, v2
    v_and_b32 v4, 0xc0, v2
    v_lshl_or_b32 v3, v4, 2, v3
    v_lshrrev_b32 v4, 4, v1
    v_lshl_or_b32 v3, v4, 6, v3
    v_add_u32 v{KR + 12}, s7, v3
    v_add_u32 v{VR + 12}, s7, v2
    ''')
    for T in range(1, 4):
        g(f'v_xor_b32 v{KR + 16 * T + 12}, {hex(T << TSH)}, v{KR + 12}')
    for T in range(1, 4):
        g(f'v_xor_b32 v{VR + 16 * T + 12}, {hex(T << TSH)}, v{VR + 12}')
    g(f'''
    s_lshr_b32 s6, s3, 6
    s_sub_u32 s6, s6, 1
    s_and_b32 s35, s4, 3
    s_lshl_b32 s35, s35, 5
    s_lshl_b32 s37, s5, 7
    s_add_u32 s35, s35, s37
    v_and_b32 v5, 7, v1
    v_and_b32 v6, 1, v4
    v_lshlrev_b32 v6, 1, v6
    v_lshl_or_b32 v6, v5, 2, v6
    v_add_u32 v204, s35, v6
    v_lshrrev_b32 v9, 3, v1
    s_lshl_b32 s35, s5, 14
    s_and_b32 s38, s4, 3
    s_lshl_b32 s38, s38, 7
    s_add_u32 s35, s35, s38
    s_add_u32 s35, s35, {WS_B + 4096}
    v_lshlrev_b32 v8, 9, v9
    v_lshl_or_b32 v8, v5, 4, v8
    v_add_u32 v211, s35, v8
    v_add_u32 v212, 0x2000, v211
    v_add_u32 v218, {hex((WS_Y - WS_B) & 0xffffffff)}, v211
    v_add_u32 v219, 0x2000, v218
    {'v_add_u32 v245, 0x22000, v218' if o['yv'] == 2 else ''}
    {'v_add_u32 v246, 0x20000, v218' if o['yv'] == 2 else ''}
    s_lshr_b32 s35, s4, 2
    s_cmp_eq_u32 s35, s5
    s_cselect_b32 s53, s6, 0
    s_cmp_eq_u32 s53, 1
    s_waitcnt lgkmcnt(0)
    s_load_dword s34, s[32:33], 0
    s_cbranch_scc0 L_nosmall
    global_load_ushort v214, v204, s[8:9]
    global_load_ushort v215, v204, s[26:27]
    global_load_ushort v216, v204, s[28:29]
    ''')
    if o['ytouch'] in (1, 2, 3) and not o['ytaux']:
        f = {1: '', 2: 'sc1', 3: 'nt'}[o['ytouch']]
        g(f'''
        global_load_dword v216, v218, s[32:33] offset:-4096 {f}
        global_load_dword v216, v218, s[32:33] {f}
        global_load_dword v216, v219, s[32:33] offset:-4096 {f}
        global_load_dword v216, v219, s[32:33] {f}
        ''')
        if o['yv'] == 2:
            g(f'''
            global_load_dword v216, v245, s[32:33] offset:-4096 {f}
            global_load_dword v216, v245, s[32:33] {f}
            global_load_dword v216, v246, s[32:33] offset:-4096 {f}
            global_load_dword v216, v246, s[32:33] {f}
            ''')
    g(f'''
    L_nosmall:
    s_barrier
    ''')
    g.stamp(1)
    n = [0]
    fixed = [None]

    def vload(txt):
        w0, w1, i0, i1 = o['sched']
        x = min(1.0, max(0.0, (n[0] - i0) / float(i1 - i0)))
        thr = fixed[0] or int(round(w0 + (w1 - w0) * x))
        if thr != int(thr):
            thr = int(thr) + (n[0] & 1)
        thr = int(thr)
        if n[0] >= thr:
            g(f's_waitcnt vmcnt({thr - 1})')
        elif n[0] > 0 and o['gap']:
            g('s_nop 0')
        g(txt)
        n[0] += 1

    def tile(base, T, sp):
        return [f'global_load_dwordx4 v[{base + 16 * T + 4 * i}:{base + 16 * T + 4 * i + 3}], v{base + 16 * T + 12}, {sp} offset:{1024 * i} {NT}' for i in range(4)]
    seq = []
    for T in range(4):
        seq += tile(KR, T, 's[10:11]')
    for T in range(4):
        seq += tile(VR, T, 's[12:13]')
    seq += [f'global_load_dwordx4 v[{WO + 4 * j}:{WO + 4 * j + 3}], v{WO + 12}, s[16:17] offset:{1024 * j} {WNT}' for j in range(4)]
    NB0 = int(round(4 * o['b0'])); NB1 = int(round(16 + 4 * o['b1']))
    NFIRST = int(min(8, int(o['sched'][0]), *(o['par'][0::2][:2] if o['par'] else [8])))
    for l in seq[:NFIRST]:
        vload(l)
    g.stamp(2)
    masks(g, M4, M8, 'v7', 'v6')
    g(f'''
    v_and_b32 v7, 0x30, v2
    v_lshl_or_b32 v7, v4, 6, v7
    ''')
    for t in range(4):
        g(f'v_mov_b32 v{200 + t}, {L_ZERO}')
    for t in range(4):
        g(f'v_mov_b32_dpp v{200 + t}, v7 quad_perm:[0,1,2,3] row_mask:0xf bank_mask:{hex(1 << t)}')
    g(f'''
    s_lshl_b32 s36, s4, 3
    s_add_u32 s36, s36, s5
    s_lshl_b32 s36, s36, 10
    s_lshl_b32 s35, s4, 17
    s_add_u32 s35, s35, s37
    s_lshl_b32 s38, s6, 15
    s_add_u32 s35, s35, s38
    v_bfe_u32 v6, v1, 3, 1
    v_lshlrev_b32 v7, 13, v4
    v_lshl_or_b32 v7, v6, 12, v7
    v_lshl_or_b32 v7, v5, 4, v7
    v_add_u32 v{WO + 12}, s35, v7
    ''')
    if o['ogm']:
        g(f'''
        s_lshl_b32 s35, s4, 13
        s_add_u32 s35, s35, {WS_O}
        s_lshl_b32 s38, s6, 11
        s_add_u32 s38, s38, s35
        v_lshlrev_b32 v7, 4, v5
        v_lshl_or_b32 v7, v4, 9, v7
        v_lshl_or_b32 v7, v6, 8, v7
        v_add_u32 v205, s38, v7
        v_and_b32 v7, 15, v1
        v_lshlrev_b32 v8, 9, v7
        v_lshl_or_b32 v8, v4, 7, v8
        s_lshl4_add_u32 s35, s5, s35
        v_add_u32 v206, s35, v8
        ''')
    else:
        g(f'''
    s_lshl_b32 s35, s4, 13
    s_lshl_b32 s38, s6, 8
    s_add_u32 s35, s35, s38
    s_add_u32 s35, s35, {WS_O}
    v_lshlrev_b32 v7, 10, v5
    v_lshl_or_b32 v7, v4, 6, v7
    v_lshl_or_b32 v7, v6, 5, v7
    v_add_u32 v205, s35, v7
    v_and_b32 v7, 15, v1
    v_lshlrev_b32 v8, 6, v7
    v_lshl_or_b32 v8, v4, 4, v8
    s_add_u32 s35, s36, {WS_O}
    v_add_u32 v206, s35, v8
        ''')
    g(f'''
    s_lshl_b32 s35, s6, 9
    s_add_u32 s35, s35, {L_O}
    v_lshl_add_u32 v207, v1, 3, s35
    s_mul_i32 s35, s6, 1280
    s_add_u32 s35, s35, {L_Y}
    v_mul_u32_u24 v8, 320, v4
    v_lshl_add_u32 v8, v7, 4, v8
    v_add_u32 v208, s35, v8
    v_bfe_u32 v8, v1, 2, 1
    v_mul_u32_u24 v8, 320, v8
    v_lshrrev_b32 v9, 3, v1
    v_lshl_add_u32 v8, v9, 4, v8
    v_and_b32 v10, 3, v1
    v_lshl_add_u32 v8, v10, 2, v8
    v_add_u32 v209, {L_Y}, v8
    s_lshl_b32 s35, s5, 5
    s_add_u32 s35, s35, s4
    s_lshl_b32 s35, s35, 9
    s_add_u32 s35, s35, {WS_Y}
    v_lshl_add_u32 v210, v1, 3, s35
    {'v_xor_b32 v244, 0x22000, v210' if o['yv'] == 2 else ''}
    s_lshl_b32 s39, s6, 2
    v_mov_b32 v213, s39
    v_and_b32 v8, 1, v4
    v_cmp_eq_u32 s[42:43], 1, v8
    s_mov_b32 s40, {SPIN}
    s_waitcnt lgkmcnt(0)
    s_add_u32 s34, s34, 0x01010101
    ''')
    def run_to_b1(upto):
        for i in range(NFIRST, upto):
            vload(seq[i])
            if i + 1 == NB0:
                if 'b' not in o['skip']:
                    g('s_barrier')
                g.stamp(3)
                fixed[0] = o['thr2']
    NEND = len(seq) if o['pure'] else NB1
    if o['par']:
        e0, e1, o0, o1 = o['par'][:4]
        g('s_getreg_b32 s35, hwreg(HW_REG_XCC_ID, 0, 1)')
        g('s_cmp_eq_u32 s35, 1')
        g('s_cbranch_scc1 L_odd')
        base = n[0]
        for nm, a, b in (('even', e0, e1), ('odd', o0, o1)):
            if nm == 'odd':
                g('L_odd:')
            n[0] = base; fixed[0] = a; o['thr2'] = b
            run_to_b1(NEND)
            if nm == 'even':
                g('s_branch L_join')
        g('L_join:')
    else:
        run_to_b1(NEND)
    rest = seq[NEND:]
    if o['pure']:
        g.stamp(4)
        for l in rest:
            vload(l)
        g('s_waitcnt vmcnt(4)')
        for i in (5, 6, 7, 11): g.stamp(i)
        g('s_waitcnt vmcnt(0)')
        for i in (8, 9, 10): g.stamp(i)
        g('s_add_u32 s6, s6, 1')
        g.stamp_out(13, 's6')
        g('s_endpgm')

    npw = [0]

    def parwait():
        if o['par'] and len(o['par']) > 4:
            npw[0] += 1
            g(f's_cbranch_scc1 L_pw{npw[0]}x')
            g(f's_waitcnt vmcnt({o["par"][4] - 1})')
            g(f'L_pw{npw[0]}x:')

    def sprinkle(k):
        k = min(k, len(rest))
        if k == 0:
            return
        lab = wskip()
        parwait()
        for _ in range(k):
            if o['spthr']:
                g(f's_waitcnt vmcnt({o["spthr"] - 1})')
            g(rest.pop(0))
        g(lab)
    g.stamp(4)
    g('s_barrier')
    g.stamp(5)
    g('L_warm1:')
    for t in range(4):
        g(f'ds_read_b128 v[{QB + 4 * t}:{QB + 4 * t + 3}], v{200 + t}')
    g(f'''
    v_mov_b32 v13, 0
    ds_read_b32 v13, v13 offset:{L_FLAG}
    s_waitcnt vmcnt({NB1 - 16}) lgkmcnt(0)
    ''')
    for tp in range(4):
        for T in range(4):
            g(mfma(DT + 4 * T, KR + 16 * T + 4 * tp, QB + 4 * tp, tp == 0))
    g('v_readfirstlane_b32 s52, v13')
    sprinkle(o['sp'][0])
    g('s_nop 3')
    for r in range(4):
        for T in range(4):
            if r == 0:
                g(f'v_mov_b32_dpp v{8 + T}, v{DT + 4 * T} quad_perm:[0,0,0,0] {DPPF}')
            else:
                g(f'v_add_f32_dpp v{8 + T}, v{DT + 4 * T + r}, v{8 + T} quad_perm:[{r},{r},{r},{r}] {DPPF}')
    sc = hex(f2u(128 ** -0.5))
    g(f'''
    v_cvt_pk_bf16_f32 v12, v8, v9
    v_cvt_pk_bf16_f32 v13, v10, v11
    v_lshlrev_b32 v8, 16, v12
    v_and_b32 v9, 0xffff0000, v12
    v_lshlrev_b32 v10, 16, v13
    v_and_b32 v11, 0xffff0000, v13
    v_mul_f32 v8, {sc}, v8
    v_mul_f32 v9, {sc}, v9
    v_mul_f32 v10, {sc}, v10
    v_mul_f32 v11, {sc}, v11
    v_cvt_pk_bf16_f32 v12, v8, v9
    v_cvt_pk_bf16_f32 v13, v10, v11
    v_lshlrev_b32 v8, 16, v12
    v_and_b32 v9, 0xffff0000, v12
    v_lshlrev_b32 v10, 16, v13
    v_and_b32 v11, 0xffff0000, v13
    v_max_f32 v12, v8, v9
    v_max3_f32 v12, v10, v11, v12
    s_nop 1
    v_max_f32_dpp v12, v12, v12 row_ror:4 {DPPF}
    s_nop 1
    v_max_f32_dpp v12, v12, v12 row_ror:8 {DPPF}
    s_nop 1
    v_max_f32_dpp v12, v12, v12 row_bcast:15 row_mask:0xa bank_mask:0xf
    s_nop 1
    v_max_f32_dpp v12, v12, v12 row_bcast:31 row_mask:0xc bank_mask:0xf
    s_nop 0
    v_readlane_b32 s35, v12, 63
    v_mov_b32 v13, 0
    s_nop 0
    v_mov_b32 v12, s35
    ds_write_b32 v213, v12 offset:{L_MAX}
    ''')
    lab = wskip()
    if rest: parwait()
    for _ in range(min(o['sp'][1], len(rest))):
        if o['spthr']:
            g(f's_waitcnt vmcnt({o["spthr"] - 1})')
        g(rest.pop(0))
    g(f'''
    s_waitcnt lgkmcnt(0)
    s_barrier
    {lab}
    ds_read_b128 v[176:179], v13 offset:{L_MAX}
    s_mov_b32 s35, {hex(f2u(LOG2E))}
    s_waitcnt lgkmcnt(0)
    v_max_f32 v12, v176, v177
    v_max3_f32 v12, v178, v179, v12
    v_mul_f32 v217, s35, v12
    v_fma_f32 v8, v8, s35, -v217
    v_fma_f32 v9, v9, s35, -v217
    v_fma_f32 v10, v10, s35, -v217
    v_fma_f32 v11, v11, s35, -v217
    v_exp_f32 v8, v8
    v_exp_f32 v9, v9
    v_exp_f32 v10, v10
    v_exp_f32 v11, v11
    ''')
    sprinkle(o['sp'][2])
    g(f'''
    s_nop 0
    v_add_f32 v12, v8, v9
    v_add_f32 v13, v10, v11
    v_cvt_pk_bf16_f32 v8, v8, v8
    v_add_f32 v12, v12, v13
    v_cvt_pk_bf16_f32 v9, v9, v9
    v_cvt_pk_bf16_f32 v10, v10, v10
    v_add_f32_dpp v12, v12, v12 row_ror:4 {DPPF}
    v_cvt_pk_bf16_f32 v11, v11, v11
    ''')
    thread = [f'v_add_f32_dpp v12, v12, v12 row_ror:8 {DPPF}',
              'v_add_f32_dpp v12, v12, v12 row_bcast:15 row_mask:0xa bank_mask:0xf',
              'v_add_f32_dpp v12, v12, v12 row_bcast:31 row_mask:0xc bank_mask:0xf',
              'v_readlane_b32 s35, v12, 63',
              'v_mov_b32 v12, s35',
              f'ds_write_b32 v213, v12 offset:{L_SUM}']
    for t in range(16):
        for j in range(4):
            g(f'v_and_b32_dpp v{KR + 4 * t + j}, v{8 + t // 4}, v{M4 + j} row_newbcast:{4 * (t % 4)} {DPPF}')
        if t < len(thread):
            g(thread[t])
        if t == 7:
            sprinkle((len(rest) + 1) // 2)
    sprinkle(99)
    g.stamp(6)
    for t in range(16):
        if t in (0, 4, 8):
            g(f's_waitcnt vmcnt({19 - (t + 3)})')
        elif t >= 12:
            g(f's_waitcnt vmcnt({19 - t})')
        g(mfma(OA, KR + 4 * t, VR + 4 * t, t == 0))
    g.stamp(7)
    g(f'''
    s_cmp_eq_u32 s6, 0
    v_mov_b32 v13, 0
    s_nop 5
    ds_write_b64 v207, v[{OA}:{OA + 1}]
    s_waitcnt lgkmcnt(0)
    s_barrier
    ''')
    g.stamp(11)
    g(f'''
    s_cbranch_scc0 L_pub1
    {'s_waitcnt lgkmcnt(0)' if o['diag'] else ''}
    ds_read2st64_b64 v[176:179], v207 offset0:1 offset1:2
    ds_read_b64 v[180:181], v207 offset:1536
    ds_read_b128 v[184:187], v13 offset:{L_SUM}
    v_mov_b32 v{OA + 2}, s34
    s_cmp_eq_u32 s52, {0 if o['loc'] else -1}
    s_waitcnt lgkmcnt(2)
    v_pk_add_f32 v[{OA}:{OA + 1}], v[{OA}:{OA + 1}], v[176:177]
    s_waitcnt lgkmcnt(1)
    v_pk_add_f32 v[178:179], v[178:179], v[180:181]
    s_waitcnt lgkmcnt(0)
    v_pk_add_f32 v[184:185], v[184:185], v[186:187]
    v_pk_add_f32 v[{OA}:{OA + 1}], v[{OA}:{OA + 1}], v[178:179]
    v_add_f32 v184, v184, v185
    ''')
    lab = wskip()
    g(f'''
    v_cndmask_b32 v{OA + 3}, v217, v184, s[42:43]
    s_cbranch_scc0 L_farpub
    global_store_dwordx4 v206, v[{OA}:{OA + 3}], s[32:33]
    L_pub1:
    ''')
    bl = '''
    s_cmp_eq_u32 s53, 1
    s_cbranch_scc0 L_nob
    global_load_dwordx4 v[228:231], v211, s[32:33] offset:-4096 sc1
    global_load_dwordx4 v[232:235], v211, s[32:33] sc1
    global_load_dwordx4 v[236:239], v212, s[32:33] offset:-4096 sc1
    global_load_dwordx4 v[240:243], v212, s[32:33] sc1
    L_nob:
    '''
    if not o['blate']:
        g(bl)
    g(f'''
    {'s_barrier' if o['b3b'] else ''}
    {'s_memrealtime s[64:65]' if o.get('wost') else ''}
    {'s_waitcnt vmcnt(0)' if o.get('wost') else ''}
    {'s_memrealtime s[72:73]' if o.get('wost') else ''}
    {'s_branch L_poll1' if o['sleep1'] else ''}
    L_again1:
    {f's_sleep {o["sleep1"]}' if o['sleep1'] else ''}
    L_poll1:
    global_load_dwordx4 v[176:179], v205, s[32:33] sc1
    global_load_dwordx4 v[180:183], v205, s[32:33] offset:{128 if o['ogm'] else 16} sc1
    s_sub_u32 s40, s40, 1
    s_cbranch_scc1 L_end
    s_waitcnt vmcnt(0)
    v_bitop3_b32 v8, v178, v182, s34 bitop3:0x7e
    v_cmp_ne_u32 vcc, 0, v8
    ''')
    if o['shrink']:
        g('''
        s_and_b64 exec, vcc, vcc
        s_cbranch_scc1 L_again1
        s_mov_b64 exec, -1
        ''')
    else:
        g('s_cbranch_vccnz L_again1')
    if o['blate']:
        g(bl)
    g(f'''
    {lab}
    ''')
    g.stamp(8)
    if o['diag']:
        g(f's_sub_u32 s84, {SPIN}, s40')
    if o.get('pflag') == 1:
        g('s_cmp_eq_u32 s52, 0\ns_cselect_b32 s84, 0, 500\ns_waitcnt lgkmcnt(0)\ns_add_u32 s84, s84, s60')
    if o.get('pflag') == 2:
        g('s_mul_i32 s84, s84, 50\ns_waitcnt lgkmcnt(0)\ns_add_u32 s84, s84, s60')
    g(f'''
    v_max_f32_dpp v8, v179, v179 quad_perm:[1,0,3,2] {DPPF}
    s_nop 1
    v_max_f32_dpp v8, v8, v8 quad_perm:[2,3,0,1] {DPPF}
    s_nop 1
    v_max_f32_dpp v8, v8, v8 row_half_mirror {DPPF}
    v_sub_f32 v8, v179, v8
    v_exp_f32 v8, v8
    s_cmp_eq_u32 s6, 0
    v_mul_f32 v183, v8, v183
    v_pk_mul_f32 v[176:177], v[8:9], v[176:177] op_sel_hi:[0,1]
    v_pk_mul_f32 v[180:181], v[8:9], v[180:181] op_sel_hi:[0,1]
    ''')
    for ctl in ('quad_perm:[1,0,3,2]', 'quad_perm:[2,3,0,1]', 'row_half_mirror'):
        for r in (183, 176, 177, 180, 181):
            g(f'v_add_f32_dpp v{r}, v{r}, v{r} {ctl} {DPPF}')
        if ctl == 'row_half_mirror':
            g.L.insert(len(g.L) - 2, '    v_rcp_f32 v8, v183')
    src = (176, 177, 180, 181)
    g('v_pk_mul_f32 v[176:177], v[8:9], v[176:177] op_sel_hi:[0,1]')
    g('v_pk_mul_f32 v[180:181], v[8:9], v[180:181] op_sel_hi:[0,1]')
    g('v_mov_b32 v9, s34')
    for j in range(4):
        g(f'v_cvt_pk_bf16_f32 v{src[j]}, v{src[j]}, v{src[j]}')
    for j in range(5):
        if j < 4:
            for jj in range(4):
                g(f'v_and_b32 v{KR + 4 * j + jj}, v{src[j]}, v{M8 + jj}')
        else:
            g('s_nop 0')
        if j >= 1:
            g(mfma(YA, KR + 4 * (j - 1), WO + 4 * (j - 1), j == 1))
    lab = wskip()
    g(f'''
    s_nop {6 if WARM else 7}
    ds_write_b128 v208, v[{YA}:{YA + 3}]
    s_waitcnt lgkmcnt(0)
    s_barrier
    s_cbranch_scc0 L_notw0
    {lab}
    ''')
    for w in range(4):
        g(f'ds_read_b32 v{176 + 2 * w}, v209 offset:{1280 * w}')
        g(f'ds_read_b32 v{177 + 2 * w}, v209 offset:{1280 * w + 768}')
    if WARM:
        g('s_cbranch_execz L_warm2')
    g(f'''
    s_waitcnt lgkmcnt(4)
    v_pk_add_f32 v[176:177], v[176:177], v[178:179]
    s_waitcnt lgkmcnt(0)
    v_pk_add_f32 v[180:181], v[180:181], v[182:183]
    v_pk_add_f32 v[176:177], v[176:177], v[180:181]
    v_add_f32 v8, v176, v177
    global_store_dwordx2 v210, v[8:9], s[32:33] sc1
    ''')
    if o['yv'] == 2:
        g('global_store_dwordx2 v244, v[8:9], s[32:33] sc1')
    g.stamp(9)
    g.stamp_out(13, '1')
    g('s_endpgm')
    g('L_notw0:')
    g.stamp(9)
    g(f'''
    s_cmp_eq_u32 s53, 1
    s_cbranch_scc0 L_done
    L_warm2:
    ''')

    def yloads():
        g('''
        global_load_dwordx4 v[176:179], v218, s[32:33] offset:-4096 sc1
        global_load_dwordx4 v[180:183], v218, s[32:33] sc1
        global_load_dwordx4 v[184:187], v219, s[32:33] offset:-4096 sc1
        global_load_dwordx4 v[188:191], v219, s[32:33] sc1
        ''')
        if o['yv'] == 2:
            g('''
            global_load_dwordx4 v[16:19], v245, s[32:33] offset:-4096 sc1
            global_load_dwordx4 v[20:23], v245, s[32:33] sc1
            global_load_dwordx4 v[24:27], v246, s[32:33] offset:-4096 sc1
            global_load_dwordx4 v[28:31], v246, s[32:33] sc1
            ''')

    def tail(r):
        g(f'''
        v_add_f32_dpp v{r}, v{r}, v{r} row_ror:8 {DPPF}
        v_add_f32_dpp v{r + 2}, v{r + 2}, v{r + 2} row_ror:8 {DPPF}
        s_nop 1
        v_permlane16_swap_b32 v{r}, v{r + 2}
        v_add_f32 v{r}, v{r}, v{r + 2}
        v_mov_b32 v{r + 2}, v{r}
        s_nop 1
        v_permlane32_swap_b32 v{r}, v{r + 2}
        v_add_f32 v{r}, v{r}, v{r + 2}
        v_cvt_pk_bf16_f32 v{r}, v{r}, v{r}
        v_and_b32 v{r}, 0xffff0000, v{r}
        ''')

    def fold1(r, lab):
        g(f'''
        s_waitcnt vmcnt(2)
        v_bitop3_b32 v8, v{r + 1}, v{r + 3}, s34 bitop3:0x7e
        v_bitop3_b32 v9, v{r + 5}, v{r + 7}, s34 bitop3:0x7e
        s_waitcnt vmcnt(0)
        v_bitop3_b32 v10, v{r + 9}, v{r + 11}, s34 bitop3:0x7e
        v_bitop3_b32 v11, v{r + 13}, v{r + 15}, s34 bitop3:0x7e
        v_or3_b32 v8, v8, v9, v10
        v_or_b32 v8, v8, v11
        v_cmp_ne_u32 vcc, 0, v8
        s_cbranch_vccnz {lab}
        v_add_f32 v{r}, v{r}, v{r + 4}
        v_add_f32 v{r + 2}, v{r + 2}, v{r + 6}
        v_add_f32 v{r + 8}, v{r + 8}, v{r + 12}
        v_add_f32 v{r + 10}, v{r + 10}, v{r + 14}
        v_add_f32 v{r}, v{r}, v{r + 8}
        v_add_f32 v{r + 2}, v{r + 2}, v{r + 10}
        s_nop 0
        ''')
        tail(r)

    def fold2(r, q, lab):
        g('s_waitcnt vmcnt(4)')
        for i in range(4):
            g(f'v_bitop3_b32 v{8 + i}, v{r + 4 * i + 1}, v{r + 4 * i + 3}, s34 bitop3:0x7e')
        for i in range(4):
            g(f'v_cmp_eq_u32 s[{44 + 2 * i}:{45 + 2 * i}], 0, v{8 + i}')
        for i in range(4):
            g(f's_waitcnt vmcnt({3 - i})')
            g(f'v_bitop3_b32 v{12}, v{q + 4 * i + 1}, v{q + 4 * i + 3}, s34 bitop3:0x7e')
            g(f'v_cndmask_b32 v{r + 4 * i}, v{q + 4 * i}, v{r + 4 * i}, s[{44 + 2 * i}:{45 + 2 * i}]')
            g(f'v_min_u32 v{8 + i}, v{8 + i}, v12')
            g(f'v_cndmask_b32 v{r + 4 * i + 2}, v{q + 4 * i + 2}, v{r + 4 * i + 2}, s[{44 + 2 * i}:{45 + 2 * i}]')
        g(f'''
        v_or3_b32 v8, v8, v9, v10
        v_or_b32 v8, v8, v11
        v_cmp_ne_u32 vcc, 0, v8
        v_add_f32 v{r}, v{r}, v{r + 4}
        v_add_f32 v{r + 2}, v{r + 2}, v{r + 6}
        s_cbranch_vccnz {lab}
        v_add_f32 v{r + 8}, v{r + 8}, v{r + 12}
        v_add_f32 v{r + 10}, v{r + 10}, v{r + 14}
        v_add_f32 v{r}, v{r}, v{r + 8}
        v_add_f32 v{r + 2}, v{r + 2}, v{r + 10}
        s_nop 0
        ''')
        tail(r)

    def fold(r, lab, waits):
        g(f'''
        {'s_waitcnt vmcnt(2)' if waits else ''}
        v_bitop3_b32 v8, v{r + 1}, v{r + 3}, s34 bitop3:0x7e
        v_bitop3_b32 v9, v{r + 5}, v{r + 7}, s34 bitop3:0x7e
        v_add_f32 v{r}, v{r}, v{r + 4}
        v_add_f32 v{r + 2}, v{r + 2}, v{r + 6}
        {'s_waitcnt vmcnt(0)' if waits else ''}
        v_bitop3_b32 v10, v{r + 9}, v{r + 11}, s34 bitop3:0x7e
        v_bitop3_b32 v11, v{r + 13}, v{r + 15}, s34 bitop3:0x7e
        v_or3_b32 v8, v8, v9, v10
        v_or_b32 v8, v8, v11
        v_cmp_ne_u32 vcc, 0, v8
        v_add_f32 v{r + 8}, v{r + 8}, v{r + 12}
        v_add_f32 v{r + 10}, v{r + 10}, v{r + 14}
        v_add_f32 v{r}, v{r}, v{r + 8}
        v_add_f32 v{r + 2}, v{r + 2}, v{r + 10}
        s_cbranch_vccnz {lab}
        v_add_f32_dpp v{r}, v{r}, v{r} row_ror:8 {DPPF}
        v_add_f32_dpp v{r + 2}, v{r + 2}, v{r + 2} row_ror:8 {DPPF}
        s_nop 1
        v_permlane16_swap_b32 v{r}, v{r + 2}
        v_add_f32 v{r}, v{r}, v{r + 2}
        v_mov_b32 v{r + 2}, v{r}
        s_nop 1
        v_permlane32_swap_b32 v{r}, v{r + 2}
        v_add_f32 v{r}, v{r}, v{r + 2}
        v_cvt_pk_bf16_f32 v{r}, v{r}, v{r}
        v_and_b32 v{r}, 0xffff0000, v{r}
        ''')
    lab = wskip()
    yloads()
    g(lab)
    g('''
    v_lshlrev_b32 v214, 16, v214
    v_lshlrev_b32 v215, 16, v215
    ''')
    if o['blate']:
        g(f's_waitcnt vmcnt({8 if o["yv"] == 2 else 4})')
    g('''
    L_chkb:
    ''')
    fold(228, 'L_retryb', False)
    g(f'''
    v_add_f32 v228, v228, v215
    v_cvt_pk_bf16_f32 v228, v228, v228
    v_and_b32 v228, 0xffff0000, v228
    v_mul_f32 v8, {hex(f2u(-LOG2E))}, v228
    v_exp_f32 v8, v8
    s_nop 0
    v_add_f32 v8, 1.0, v8
    v_rcp_f32 v8, v8
    s_nop 0
    v_mul_f32 v215, v228, v8
    v_cvt_pk_bf16_f32 v215, v215, v215
    v_and_b32 v215, 0xffff0000, v215
    s_branch L_chky
    L_poll2:
    ''')
    yloads()
    g('''
    s_sub_u32 s40, s40, 1
    s_cbranch_scc1 L_end
    L_chky:
    ''')
    if o['yv'] == 0:
        fold(176, 'L_poll2', True)
    elif o['yv'] == 1:
        fold1(176, 'L_poll2')
    else:
        fold2(176, 16, 'L_poll2')
    g(f'''
    v_mul_f32 v176, v176, v215
    v_cvt_pk_bf16_f32 v176, v176, v176
    v_and_b32 v176, 0xffff0000, v176
    v_add_f32 v176, v176, v214
    {'s_cbranch_execz L_warm3' if WARM else ''}
    v_cvt_pk_bf16_f32 v176, v176, v176
    s_mov_b64 exec, 0x00ff00ff
    global_store_short v204, v176, s[28:29] {o['outf']}
    s_cmp_eq_u32 s2, 0
    s_cbranch_scc0 L_done
    v_mov_b32 v8, 0
    v_mov_b32 v9, s34
    s_mov_b64 exec, 1
    global_store_dword v8, v9, s[32:33] {o.get('epf', '')}
    L_done:
    ''')
    g.stamp(10)
    if o['diag']:
        g('s_add_u32 s6, s6, 1')
    g.stamp_out(13, 's6')
    if o['probe']:
        probe(g, o)
    g(f'''
    L_end:
    s_endpgm
    L_retryb:
    global_load_dwordx4 v[228:231], v211, s[32:33] offset:-4096 sc1
    global_load_dwordx4 v[232:235], v211, s[32:33] sc1
    global_load_dwordx4 v[236:239], v212, s[32:33] offset:-4096 sc1
    global_load_dwordx4 v[240:243], v212, s[32:33] sc1
    s_sub_u32 s40, s40, 1
    s_cbranch_scc1 L_end
    s_waitcnt vmcnt(0)
    s_branch L_chkb
    L_farpub:
    global_store_dwordx4 v206, v[{OA}:{OA + 3}], s[32:33] sc1
    s_branch L_pub1
    ''')


def probe(g, o):
    wv, idx, kind, K = o['probe']
    mm = 'v_max_u32' if kind == 'max' else 'v_min_u32'
    g(f'''
    s_cmp_eq_u32 s2, 0
    s_cbranch_scc0 L_end
    s_cmp_eq_u32 s6, 2
    s_cbranch_scc0 L_end
    s_mov_b64 exec, -1
    s_memrealtime s[50:51]
    s_waitcnt lgkmcnt(0)
    L_pw:
    s_memrealtime s[52:53]
    s_waitcnt lgkmcnt(0)
    s_sub_u32 s52, s52, s50
    s_cmp_lt_u32 s52, 300
    s_cbranch_scc1 L_pw
    v_lshlrev_b32 v2, 10, v1
    v_add_u32 v2, {WS_ST}, v2
    ''')
    for i in range(4):
        g(f'global_load_dword v{8 + i}, v2, s[32:33] sc1')
        g(f'global_load_dword v{12 + i}, v2, s[32:33] offset:{wv * 128 + idx * 4} sc1')
        g('v_add_u32 v2, 0x10000, v2')
    g(f'''
    s_waitcnt vmcnt(0)
    v_min_u32 v8, v8, v9
    v_min_u32 v10, v10, v11
    v_min_u32 v8, v8, v10
    {mm} v12, v12, v13
    {mm} v14, v14, v15
    {mm} v12, v12, v14
    ''')
    wave_sum(g, ['v8'], 'v_min_u32')
    wave_sum(g, ['v12'], mm)
    g(f'''
    s_nop 1
    v_readlane_b32 s52, v8, 63
    v_readlane_b32 s53, v12, 63
    s_nop 3
    s_sub_u32 s54, s53, s52
    ''')
    if kind == 'raw':
        g(f'''
        v_mov_b32 v2, {WS_ST + 0x100000}
        global_load_dword v2, v2, s[32:33] sc1
        s_waitcnt vmcnt(0)
        v_readfirstlane_b32 s54, v2
        s_nop 3
        ''')
    g(f'''
    s_min_u32 s54, s54, 3000
    s_mul_i32 s54, s54, {K}
    s_add_u32 s54, s54, 400
    L_pw2:
    s_memrealtime s[52:53]
    s_waitcnt lgkmcnt(0)
    s_sub_u32 s52, s52, s50
    s_cmp_lt_u32 s52, s54
    s_cbranch_scc1 L_pw2
    ''')


def gen_aux(g, o):
    WNT = o['wnt'] if isinstance(o['wnt'], str) else ('nt' if o['wnt'] else '')
    WARM = o['warm']
    YT = 1 if o['ytouch'] >= 4 else 0
    WQ = 16; W1 = 80; W2 = 144; E = [f'v{168 + i}' for i in range(8)]; AS = (176, 180); QA = 184; ZA = 188
    g(f'''
    L_aux:
    s_setprio 3
    {'s_lshr_b32 s58, s2, 3' if o['qlin'] else 's_mov_b32 s58, s4'}
    {'s_and_b32 s59, s2, 7' if o['qlin'] else 's_mov_b32 s59, s5'}
    v_and_b32 v2, 15, v1
    v_lshrrev_b32 v3, 4, v1
    v_lshlrev_b32 v10, 4, v1
    s_lshl_b32 s6, s59, 7
    v_lshlrev_b32 v11, 1, v3
    v_lshl_or_b32 v11, v2, 3, v11
    v_add_u32 v8, s6, v11
    s_lshl_b32 s7, s59, 19
    s_lshl_b32 s35, s58, 8
    s_add_u32 s7, s7, s35
    v_lshlrev_b32 v12, 4, v2
    v_lshl_or_b32 v13, v3, 13, v12
    v_add_u32 v{WQ}, s7, v13
    s_mov_b32 s38, 0x8000
    ''')
    if o.get('st8'): g.stamp(8)
    g('s_waitcnt lgkmcnt(0)')
    g.stamp(1)
    g('''
    global_load_dwordx4 v[4:7], v10, s[8:9]
    global_load_ushort v8, v8, s[8:9]
    s_load_dword s34, s[32:33], 0
    ''')
    for t in range(16):
        r = WQ + 4 * t
        if t < 15:
            g(f'v_add_u32 v{r + 4}, s38, v{r}')
        g(f'global_load_dwordx4 v[{r}:{r + 3}], v{r}, s[14:15] {WNT}')
    g(f'''
    ''')
    if o['qlin']:
        g(f'''
        s_mul_i32 s35, s58, 43
        s_lshr_b32 s35, s35, 3
        s_lshl_b32 s35, s35, 4
        s_mul_i32 s7, s59, {64 * 2752}
        s_add_u32 s7, s7, s35
        s_mul_i32 s36, s4, 43
        s_add_u32 s37, s36, 43
        s_lshr_b32 s36, s36, 3
        s_lshr_b32 s37, s37, 3
        s_sub_u32 s37, s37, s36
        s_lshl_b32 s35, s36, 4
        s_lshl_b32 s6, s5, 7
        ''')
    else:
        g(f'''
    s_and_b32 s36, s4, 7
    s_lshr_b32 s37, s4, 3
    s_lshl2_add_u32 s36, s36, s37
    s_mul_i32 s36, s36, 43
    s_add_u32 s37, s36, 43
    s_lshr_b32 s36, s36, 3
    s_lshr_b32 s37, s37, 3
    s_sub_u32 s37, s37, s36
    s_mul_i32 s7, s5, {64 * 2752}
    s_lshl_b32 s35, s36, 4
    s_add_u32 s7, s7, s35
        ''')
    g(f'''
    v_mul_u32_u24 v13, 2752, v3
    v_add3_u32 v{W1}, v13, v12, s7
    v_lshl_or_b32 v203, v3, 2, v12
    ''')
    if o['mergez']:
        g('''
        v_and_b32 v9, 7, v2
        v_min_u32 v9, 5, v9
        v_lshlrev_b32 v9, 4, v9
        v_lshl_or_b32 v9, v3, 2, v9
        v_lshrrev_b32 v13, 3, v2
        v_lshl_or_b32 v9, v13, 1, v9
        v_add_u32 v9, s35, v9
        ''')
    else:
        g('v_add_u32 v9, s35, v203')
    g(f'''
    s_lshl_b32 s7, s36, 13
    s_add_u32 s7, s7, s6
    v_lshrrev_b32 v13, 3, v2
    v_lshl_or_b32 v13, v3, 1, v13
    v_lshlrev_b32 v13, 10, v13
    v_and_b32 v14, 7, v2
    v_lshl_or_b32 v13, v14, 4, v13
    v_add_u32 v{W2}, s7, v13
    s_movk_i32 s38, 11008
    s_movk_i32 s39, 8192
    s_mov_b32 s54, 0x003f003f
    s_mov_b32 s55, s54
    s_mov_b64 exec, s[54:55]
    ''')
    for t in range(16):
        r = W1 + 4 * t
        if t < 15:
            g(f'v_add_u32 v{r + 4}, s38, v{r}')
        g(f'global_load_dwordx4 v[{r}:{r + 3}], v{r}, s[20:21] {WNT}')
    if o['mergez']:
        g('s_mov_b64 exec, -1')
        g('global_load_ushort v9, v9, s[22:23]')
    else:
        g('global_load_dword v9, v9, s[22:23]')
        g('s_mov_b64 exec, -1')
    for t in range(6):
        r = W2 + 4 * t
        if t < 5:
            g(f'v_add_u32 v{r + 4}, s39, v{r}')
        if t == 5 and o['w2skip']:
            g(f'''
            s_cmp_eq_u32 s37, 5
            s_cselect_b64 exec, 1, -1
            s_cselect_b32 s39, s39, 0
            v_subrev_u32 v{r}, s39, v{r}
            global_load_dwordx4 v[{r}:{r + 3}], v{r}, s[24:25] {WNT}
            s_mov_b64 exec, -1
            ''')
        else:
            g(f'global_load_dwordx4 v[{r}:{r + 3}], v{r}, s[24:25] {WNT}')
    if o['ytouch'] >= 4:
        nl = {4: 4, 5: 8, 6: 16, 7: 24}[o['ytouch']]
        g(f'''
        s_lshl_b32 s7, s5, 5
        s_add_u32 s7, s7, s4
        s_lshl_b32 s7, s7, 9
        s_add_u32 s7, s7, {WS_Y}
        v_lshl_add_u32 v15, v1, 7, s7
        ''')
        if nl > 4:
            g(f'''
            s_mov_b64 exec, 0xf0
            v_add_u32 v15, {WS_B - WS_Y - 512}, v15
            ''')
        if nl > 8:
            g(f'''
            s_lshl_b32 s7, s2, 10
            s_add_u32 s7, s7, {WS_Q - 1024}
            s_mov_b64 exec, 0xff00
            v_lshl_add_u32 v15, v1, 7, s7
            ''')
        if nl > 16:
            g(f'''
            s_lshl_b32 s7, s4, 3
            s_add_u32 s7, s7, s5
            s_lshl_b32 s7, s7, 10
            s_add_u32 s7, s7, {WS_O - 2048}
            s_mov_b64 exec, 0xff0000
            v_lshl_add_u32 v15, v1, 7, s7
            ''')
        g(f'''
        s_mov_b64 exec, {hex((1 << nl) - 1)}
        global_load_dword v15, v15, s[32:33]
        s_mov_b64 exec, -1
        ''')
    if o['sbpos'] == 'issue' or o['pure'] == 1:
        g('s_barrier')
    g.stamp(2)
    if o['pure'] == 1:
        g('s_waitcnt vmcnt(0)')
        for i in range(3, 10): g.stamp(i)
        g('s_getreg_b32 s80, hwreg(HW_REG_HW_ID)')
        g.stamp_out(11, '0')
        g('s_endpgm')
    masks(g, M4, M8, 'v13', 'v14')
    g(f'''
    s_lshl_b32 s7, s58, 13
    s_lshl_b32 s35, s59, 10
    s_add_u32 s35, s35, s7
    s_add_u32 s35, s35, {WS_Q}
    v_add_u32 v200, s35, v10
    s_lshl_b32 s7, s4, 6
    s_add_u32 s7, s7, {WS_X}
    v_and_b32 v13, 7, v1
    v_lshl_add_u32 v206, v13, 3, s7
    s_lshl3_add_u32 s7, s5, s7
    v_mov_b32 v207, s7
    s_lshl_b32 s7, s4, 13
    s_add_u32 s7, s7, {WS_Q + 4096}
    v_add_u32 v201, s7, v10
    v_add_u32 v202, {hex(WS_Z - WS_Q)}, v201
    v_add_u32 v205, {hex(WS_Z - WS_Q)}, v200
    s_lshl_b32 s7, s5, 5
    s_add_u32 s7, s7, s4
    s_lshl_b32 s7, s7, 9
    s_add_u32 s7, s7, {WS_B}
    v_and_b32 v13, 1, v3
    v_lshlrev_b32 v13, 5, v13
    v_lshl_or_b32 v13, v2, 6, v13
    v_lshrrev_b32 v14, 1, v3
    v_lshl_or_b32 v13, v14, 3, v13
    v_add_u32 v204, s7, v13
    v_and_b32 v13, 3, v1
    v_lshlrev_b32 v13, 2, v13
    v_mov_b32 v14, 0
    ds_write_b32 v13, v14 offset:{L_ZERO}
    s_mov_b32 s40, {SPIN}
    s_getreg_b32 s39, hwreg(HW_REG_XCC_ID, 0, 4)
    s_waitcnt vmcnt({39 + YT})
    ''')
    g.stamp(3)
    for i in range(4):
        g(f'v_lshlrev_b32 {E[2 * i]}, 16, v{4 + i}')
        g(f'v_and_b32 {E[2 * i + 1]}, 0xffff0000, v{4 + i}')
    g('v_lshlrev_b32 v8, 16, v8')

    def normalise_own():
        layernorm_stats(g, E, 'v4', 'v5', 's35', 'v6', 'v7')
        g('v_sub_f32 v8, v8, v6')
        bf_round(g, 'v8', 'v8')
        g('v_mul_f32 v8, v8, v7')
        g('v_cvt_pk_bf16_f32 v8, v8, v8')
        g('s_nop 1')

    def gemv16(src, base, acc, vm0, bar=None):
        for t in range(17):
            if t < 16:
                for j in range(4):
                    g(f'v_and_b32_dpp v{AS[t % 2] + j}, {src}, v{M4 + j} row_newbcast:{t} {DPPF}')
            else:
                g('s_nop 1')
            if t >= 1:
                k = t - 1
                if k % 4 == 0 and k < 12:
                    g(f's_waitcnt vmcnt({vm0 - (k + 3)})')
                elif k >= 12:
                    g(f's_waitcnt vmcnt({vm0 - k})')
                if k == bar:
                    g('s_barrier')
                g(mfma(acc, AS[k % 2], base + 4 * k, k == 0))
    if o['sbpos'] == 'x':
        g('s_barrier')
    normalise_own()
    gemv16('v8', WQ, QA, 38 + YT, o['sbpos'] if isinstance(o['sbpos'], int) else None)
    for i in range(8):
        g(f'v_sub_f32 {E[i]}, {E[i]}, v6')
    if not o['mergez']:
        g(f'''
        s_waitcnt lgkmcnt(0)
        s_add_u32 s34, s34, 0x01010101
        v_mov_b32 v{QA + 2}, s34
        v_mov_b32 v{QA + 3}, s39
        {'global_load_dword v14, v10, s[8:9]' if 's' in o['skip'] else f'global_store_dwordx4 v200, v[{QA}:{QA + 3}], s[32:33] sc1'}
        ''')
    g.stamp(4)
    for i in range(8):
        bf_round(g, E[i], E[i])
    for i in range(8):
        g(f'v_mul_f32 {E[i]}, {E[i]}, v7')
    for i in range(8):
        bf_round(g, E[i], E[i])
    g('v_and_b32 v8, 0xffff0000, v8')
    normalise_own()
    gemv16('v8', W1, ZA, YT + (22 if o['mergez'] else 23))
    if o['mergez']:
        g(f'''
        s_waitcnt lgkmcnt(0)
        s_add_u32 s34, s34, 0x01010101
        v_mov_b32 v{QA + 3}, s39
        v_mov_b32 v{QA + 2}, s34
        s_mov_b32 s56, 0x3f3f3f3f
        s_mov_b32 s57, s56
        s_nop 1
        v_mov_b32_dpp v{ZA}, v{ZA + 1} row_ror:8 row_mask:0xf bank_mask:0xc
        v_cndmask_b32 v{QA + 3}, v{QA + 3}, v{ZA}, s[56:57]
        {'' if 's' in o['skip'] else f'global_store_dwordx4 v200, v[{QA}:{QA + 3}], s[32:33] sc1'}
        ''')
        if o['qlin']:
            g(f'''
            v_mov_b32 v12, s39
            v_mov_b32 v13, s34
            s_mov_b64 exec, 1
            global_store_dwordx2 v207, v[12:13], s[32:33] sc1
            s_mov_b64 exec, -1
            ''')
    else:
        g(f'''
        s_nop 7
        v_mov_b32 v{ZA + 2}, s34
        v_mov_b32 v{ZA + 3}, s34
        s_mov_b64 exec, s[54:55]
        {'' if 's' in o['skip'] else f'global_store_dwordx4 v205, v[{ZA}:{ZA + 3}], s[32:33] sc1'}
        ''')
    if o['prew'] == 2:
        g(f'''
        s_lshl_b32 s7, s4, 3
        s_add_u32 s7, s7, s5
        s_lshl_b32 s7, s7, 10
        s_add_u32 s7, s7, {WS_O}
        v_and_b32 v14, 7, v1
        v_lshl_add_u32 v14, v14, 7, s7
        global_load_dword v14, v14, s[32:33]
        ''')
    if o['prew'] == 1:
        g(f'''
        ''')
        if o['ogm']:
            g(f'''
            s_lshl_b32 s7, s4, 13
            s_add_u32 s7, s7, {WS_O}
            s_lshl4_add_u32 s7, s5, s7
            v_lshl_add_u32 v14, v1, 7, s7
            ''')
        else:
            g(f'''
        s_lshl_b32 s7, s4, 3
        s_add_u32 s7, s7, s5
        s_lshl_b32 s7, s7, 10
        s_add_u32 s7, s7, {WS_O}
        v_add_u32 v14, s7, v10
            ''')
        g(f'''
        v_not_b32 v{ZA + 2}, v{QA + 2}
        global_store_dwordx4 v14, v[{ZA}:{ZA + 3}], s[32:33]
        ''')
    g.stamp(5)
    g('s_barrier')
    g.stamp(6)
    ZP = 48; QP = 16

    def polls(base, addr, n):
        if 'p' in o['skip']: return
        for p in range(8):
            g(f'global_load_dwordx{n} v[{base + 4 * p}:{base + 4 * p + n - 1}], {addr}, s[32:33] offset:{1024 * p - 4096} sc1')

    def alleq(base, word, sreg):
        for p in range(4):
            g(f'v_bitop3_b32 v{10 + p}, v{base + 8 * p + word}, v{base + 8 * p + 4 + word}, {sreg} bitop3:0x7e')
        g('v_or3_b32 v10, v10, v11, v12')
        g('v_or_b32 v10, v10, v13')

    def sum8(base):
        for st in (1, 2, 4):
            for p in range(0, 8, 2 * st):
                a = base + 4 * p; b = base + 4 * (p + st)
                g(f'v_pk_add_f32 v[{a}:{a + 1}], v[{a}:{a + 1}], v[{b}:{b + 1}]')
    if o['ytouch'] and o['ytaux']:
        g(f'''
        s_lshr_b32 s35, s4, 2
        s_cmp_eq_u32 s35, s5
        s_cbranch_scc0 L_pollq
        s_lshl_b32 s35, s5, 14
        s_and_b32 s7, s4, 3
        s_lshl_b32 s7, s7, 7
        s_add_u32 s35, s35, s7
        s_add_u32 s35, s35, {WS_Y}
        v_and_b32 v14, 31, v1
        v_lshl_add_u32 v14, v14, 9, s35
        global_load_dword v14, v14, s[32:33]
        ''')
    g('L_pollq:')
    if not o['mergez']:
        g('s_mov_b64 exec, s[54:55]')
        polls(ZP, 'v202', 3)
        g('s_mov_b64 exec, -1')
    polls(QP, 'v201', 4)
    if o['qlin'] and 'p' not in o['skip']:
        g('global_load_dwordx2 v[48:49], v206, s[32:33] sc1')
    g('''
    s_sub_u32 s40, s40, 1
    s_cbranch_scc1 L_end
    s_waitcnt vmcnt(0)
    L_warm3:
    ''')
    alleq(QP, 2, 's34')
    if o['qlin']:
        g('v_xor_b32 v11, s34, v49')
        g('v_or_b32 v10, v10, v11')
    g('v_cmp_ne_u32 vcc, 0, v10')
    if 'p' not in o['skip']: g('s_cbranch_vccnz L_pollq')
    sum8(QP)
    g(f'''
    v_cvt_pk_bf16_f32 v{QP}, v{QP}, v{QP + 1}
    ds_write_b32 v203, v{QP} offset:{L_Q}
    ''')
    if o['qlin']:
        g('''
        v_cmp_ne_u32 vcc, s39, v48
        s_cmp_lg_u64 vcc, 0
        s_cselect_b32 s35, 1, 0
        v_mov_b32 v10, s35
        ''')
    else:
        alleq(QP, 3, 's39')
    if o['mergez'] and not o['qlin']:
        g('s_nop 1')
        g(f'v_mov_b32_dpp v10, v10 row_newbcast:15 {DPPF}')
    if o['diag']:
        g(f's_sub_u32 s80, {SPIN}, s40')
    g(f'''
    v_mov_b32 v11, 0
    ds_write_b32 v11, v10 offset:{L_FLAG}
    {'s_cbranch_execz L_chkz' if WARM else ''}
    s_waitcnt lgkmcnt(0)
    ''')
    g.stamp(7)
    if o['pure'] == 2:
        for i in range(8, 10): g.stamp(i)
        g.stamp_out(11, '0')
        g('s_endpgm')
    g('''
    s_barrier
    s_barrier
    L_chkz:
    ''')
    k0 = hex(f2u(0.044715)); k1 = hex(f2u(-2.0 * 0.7978845608028654 * LOG2E))
    if o['mergez']:
        if not o.get('st8'): g.stamp(8)
        for st in (1, 2, 4):
            for p in range(0, 8, 2 * st):
                g(f'v_add_f32 v{QP + 4 * p + 3}, v{QP + 4 * p + 3}, v{QP + 4 * (p + st) + 3}')
        z = f'v{QP + 3}'
        bf_round(g, z, z)
        g(f'''
        v_lshlrev_b32 v9, 16, v9
        v_add_f32 {z}, {z}, v9
        ''')
        bf_round(g, z, z)
        g(f'''
        v_mul_f32 v10, {z}, {z}
        v_mul_f32 v10, v10, {z}
        v_fmamk_f32 v10, v10, {k0}, {z}
        v_mul_f32 v10, {k1}, v10
        v_exp_f32 v10, v10
        s_nop 0
        v_add_f32 v10, 1.0, v10
        v_rcp_f32 v10, v10
        s_nop 0
        v_mul_f32 v10, v10, {z}
        v_cvt_pk_bf16_f32 v10, v10, v10
        s_nop 1
        ''')
    else:
        alleq(ZP, 2, 's34')
        g('''
        v_cmp_ne_u32 vcc, 0, v10
        s_and_b64 vcc, vcc, s[54:55]
        ''')
        if 'p' not in o['skip']: g('s_cbranch_vccnz L_retryz')
        g.stamp(8)
        sum8(ZP)
        z0, z1 = f'v{ZP}', f'v{ZP + 1}'
        k0 = hex(f2u(0.044715)); k1 = hex(f2u(-2.0 * 0.7978845608028654 * LOG2E))
        g(f'''
        v_cvt_pk_bf16_f32 {z0}, {z0}, {z1}
        v_lshlrev_b32 v10, 16, v9
        v_and_b32 v11, 0xffff0000, v9
        v_and_b32 {z1}, 0xffff0000, {z0}
        v_lshlrev_b32 {z0}, 16, {z0}
        v_add_f32 {z0}, {z0}, v10
        v_add_f32 {z1}, {z1}, v11
        v_cvt_pk_bf16_f32 {z0}, {z0}, {z1}
        v_and_b32 {z1}, 0xffff0000, {z0}
        v_lshlrev_b32 {z0}, 16, {z0}
        v_mul_f32 v10, {z0}, {z0}
        v_mul_f32 v11, {z1}, {z1}
        v_mul_f32 v10, v10, {z0}
        v_mul_f32 v11, v11, {z1}
        v_fmamk_f32 v10, v10, {k0}, {z0}
        v_fmamk_f32 v11, v11, {k0}, {z1}
        v_mul_f32 v10, {k1}, v10
        v_mul_f32 v11, {k1}, v11
        v_exp_f32 v10, v10
        v_exp_f32 v11, v11
        s_nop 0
        v_add_f32 v10, 1.0, v10
        v_add_f32 v11, 1.0, v11
        v_rcp_f32 v10, v10
        v_rcp_f32 v11, v11
        s_nop 0
        v_mul_f32 v10, v10, {z0}
        v_mul_f32 v11, v11, {z1}
        v_cvt_pk_bf16_f32 v10, v10, v10
        v_cvt_pk_bf16_f32 v11, v11, v11
        s_nop 1
        ''')
    BA = 184
    for jj in range(6):
        if jj == 5:
            g('s_cmp_eq_u32 s37, 5')
            g('s_cbranch_scc1 L_five')
        a = AS[jj % 2]
        g(f'v_mov_b32_dpp v12, v10 row_newbcast:{jj} row_mask:0xf bank_mask:0x3')
        if o['mergez']:
            g(f'v_mov_b32_dpp v12, v10 row_newbcast:{jj + 8} row_mask:0xf bank_mask:0xc')
        else:
            g(f'v_mov_b32_dpp v12, v11 row_newbcast:{jj} row_mask:0xf bank_mask:0xc')
        for j in range(4):
            g(f'v_and_b32 v{a + j}, v12, v{M8 + j}')
        g('s_nop 1')
        g(mfma(BA, a, W2 + 4 * jj, jj == 0))
    g(f'''
    L_five:
    s_nop 7
    v_permlane32_swap_b32 v{BA}, v{BA + 1}
    v_permlane32_swap_b32 v{BA + 2}, v{BA + 3}
    v_mov_b32 v11, s34
    v_mov_b32 v13, s34
    v_add_f32_dpp v10, v{BA + 1}, v{BA} row_ror:8 {DPPF}
    v_add_f32_dpp v12, v{BA + 3}, v{BA + 2} row_ror:8 {DPPF}
    {'s_cbranch_execz L_wend' if WARM else ''}
    s_mov_b32 exec_lo, 0x00ff00ff
    s_mov_b32 exec_hi, 0x00ff00ff
    global_store_dwordx2 v204, v[10:11], s[32:33] sc1
    global_store_dwordx2 v204, v[12:13], s[32:33] offset:16 sc1
    ''')
    g.stamp(9)
    g('s_barrier')
    if o['b3b']:
        g('s_barrier')
    g('s_barrier')
    g.stamp_out(11, '0')
    g('s_endpgm')
    if not o['mergez']:
        g('''
        L_retryz:
        s_sub_u32 s40, s40, 1
        s_cbranch_scc1 L_end
        s_mov_b64 exec, s[54:55]
        ''')
        polls(ZP, 'v202', 3)
        g('''
        s_mov_b64 exec, -1
        s_waitcnt vmcnt(0)
        s_branch L_chkz
        ''')
    if WARM:
        g('L_wend:')
        if o.get('wdiag'):
            g.stamp(1)
            g.stamp_out(2, '5')
        g('s_endpgm')


def gen(opt):
    o = dict(DEFAULTS); o.update(opt)
    if o['pure']:
        o['warm'] = min(o['warm'], 1)
    g = G(o)
    g.stamp(0)
    g('''
    s_load_dwordx16 s[8:23], s[0:1], 0
    s_load_dwordx8 s[24:31], s[0:1], 64
    s_load_dwordx2 s[32:33], s[0:1], 96
    v_readfirstlane_b32 s3, v0
    s_cmp_ge_u32 s2, 256
    s_cbranch_scc1 L_end
    ''')
    if o['lin']:
        g('s_lshr_b32 s4, s2, 3\ns_and_b32 s5, s2, 7')
    else:
        g('s_and_b32 s4, s2, 31\ns_lshr_b32 s5, s2, 5')
    if o.get('latp'):
        sp, off = o['latp']
        g(f'''
        s_waitcnt lgkmcnt(0)
        s_cmp_eq_u32 s2, 0
        s_cselect_b32 s35, s3, 0
        s_cmp_eq_u32 s35, 320
        s_cbranch_scc0 L_lp1
        s_mov_b64 exec, 1
        v_mov_b32 v2, {off + 0x1000}
        global_load_dword v3, v2, {sp} nt
        s_waitcnt vmcnt(0)
        s_mov_b32 s39, 0
        ''')
        for i in range(4):
            g(f'''
            v_mov_b32 v2, {off + 0x2000 * i + 0x200}
            s_memtime s[44:45]
            s_waitcnt lgkmcnt(0)
            global_load_dword v3, v2, {sp} nt
            s_waitcnt vmcnt(0)
            s_memtime s[46:47]
            s_waitcnt lgkmcnt(0)
            s_sub_u32 s46, s46, s44
            s_add_u32 s39, s39, s46
            ''')
        g(f'''
        s_lshr_b32 s39, s39, 3
        v_mov_b32 v2, {WS_ST + 0x100000}
        v_mov_b32 v3, s39
        global_store_dword v2, v3, s[32:33] sc1
        s_mov_b64 exec, -1
        L_lp1:
        s_memrealtime s[44:45]
        s_waitcnt lgkmcnt(0)
        s_sub_u32 s44, s44, s60
        s_cmp_lt_u32 s44, 400
        s_cbranch_scc1 L_lp1
        ''')
    if o['five']:
        o['warm'] = 0
        g('''
        v_and_b32 v1, 63, v0
        s_cmp_lt_u32 s3, 64
        s_cbranch_scc0 L_stream
        s_getpc_b64 s[36:37]
        L_pc:
        s_bfe_u32 s35, s2, 0x30003
        s_mul_i32 s35, s35, 1280
        v_lshl_add_u32 v15, v1, 7, s35
        v_min_u32 v15, L_codeend-L_pc-4, v15
        s_mov_b64 exec, 0x3ff
        global_load_dword v247, v15, s[36:37]
        s_mov_b64 exec, -1
        ''')
    else:
        g('''
        v_and_b32 v1, 63, v0
        s_cmp_lt_u32 s3, 64
        s_cbranch_scc1 L_aux
        s_cmp_lt_u32 s3, 320
        s_cbranch_scc1 L_stream
        ''')
    if o['five']:
        pass
    elif o['cpfsplit']:
        g('''
        s_getpc_b64 s[36:37]
        L_pc:
        s_bfe_u32 s35, s2, 0x30003
        s_mul_i32 s35, s35, 1280
        v_lshl_add_u32 v2, v1, 7, s35
        v_min_u32 v2, L_codeend-L_pc-4, v2
        s_mov_b64 exec, 0x3ff
        global_load_dword v2, v2, s[36:37]
        s_barrier
        ''')
    else:
        g('''
        s_getpc_b64 s[36:37]
        L_pc:
        v_lshlrev_b32 v2, 7, v1
        v_add_u32 v3, 0x2000, v2
        v_min_u32 v2, L_codeend-L_pc-4, v2
        v_min_u32 v3, L_codeend-L_pc-4, v3
        global_load_dword v2, v2, s[36:37]
        global_load_dword v3, v3, s[36:37]
        s_barrier
        ''')
    if o['warm'] and not o['pure']:
        g('''
        s_mov_b32 s6, 0
        s_mov_b64 s[54:55], 0
        s_waitcnt vmcnt(0) lgkmcnt(0)
        s_mov_b64 exec, 0
        s_branch L_warm1
        ''')
    elif not o['five']:
        g('s_endpgm')
    pro = g.take()
    gen_aux(g, o)
    aux = g.take()
    gen_stream(g, o)
    strm = g.take()
    body = pro + aux + strm + ['L_codeend:']
    head = open('recurrent_scan__sliding_block_cached__mixer_channel_mlp__decode.s.ref').read().split('; Override launch')[0]
    return head + f'''; One workgroup per (head, 256-key split): wave 0 = projection / MLP helper, waves 1-4 stream K and V, wave 5 = code warm-up.
; @launch grid=(256,1,1) block=({320 if o['five'] else 384},1,1) lds={LDS_BYTES}
.amdgcn_target "amdgcn-amd-amdhsa--gfx950"
.text
.globl {KN}
.p2align 8
.type {KN},@function
{KN}:
''' + '\n'.join(body) + f'''
.section .rodata,"a"
.p2align 6
.amdhsa_kernel {KN}
  .amdhsa_next_free_vgpr 248
  .amdhsa_next_free_sgpr 96
  .amdhsa_accum_offset 248
  .amdhsa_group_segment_fixed_size 0
  .amdhsa_kernarg_size 104
  .amdhsa_user_sgpr_count 2
  .amdhsa_user_sgpr_kernarg_segment_ptr 1
  .amdhsa_system_sgpr_workgroup_id_x 1
  .amdhsa_float_denorm_mode_32 3
.end_amdhsa_kernel
'''


if __name__ == '__main__':
    out = sys.argv[1]
    opt = eval(sys.argv[2]) if len(sys.argv) > 2 else {}
    open(out, 'w').write(gen(opt))
```

```python
import sys, struct

KN = 'recurrent_scan__sliding_block_cached__mixer_channel_mlp__decode_kernel'

def f2u(x):
    return struct.unpack('<I', struct.pack('<f', x))[0]

LOG2E = 1.4426950408889634
WS_Q = 0x10000
WS_Z = 0x60000
WS_O = 0xB0000
WS_Y = 0x100000
WS_B = 0x140000
WS_X = 0x8000
WS_ST = 0x200000
L_Q = 0; L_ZERO = 256; L_MAX = 272; L_SUM = 288; L_FLAG = 304; L_O = 512; L_Y = 2560; LDS_BYTES = 8192
DPPF = 'row_mask:0xf bank_mask:0xf'
SPIN = 100000

DEFAULTS = dict(diag=0, nt=1, wnt=1, warm=1, loc=1, b0=4, b1=3, sched=(5, 5, 0, 1), thr2=12, sp=(2, 2, 3), gap=1, b3b=1,
                pure=0, oclean=0, bits=None, rs='s1', slot3=None, ostf='', align=0, ksplit=0, five=0, blate=1, ogm=1, par=None, cpfsplit=1, ytaux=0, w2skip=1, yv=1, sbpos='issue', prew=0, kvmap=3, qlin=1, mergez=1, shrink=1, sleep1=0, skip='', ytouch=4, probe=None, lin=0, outf='', map=0, spthr=0)


class G:
    def __init__(self, opt):
        self.L = []
        self.o = opt

    def __call__(self, s):
        for line in s.strip('\n').split('\n'):
            line = line.strip()
            if not line:
                continue
            self.L.append(line if (line.endswith(':') and not line.startswith(';')) else '    ' + line)

    def take(self):
        L, self.L = self.L, []
        return L

    def stamp(self, i):
        if self.o['diag']:
            self(f's_memrealtime s[{60 + 2 * i}:{61 + 2 * i}]')

    def stamp_out(self, n, wave):
        if not self.o['diag']:
            return
        self(f'''
        s_waitcnt lgkmcnt(0)
        s_lshl_b32 s41, s2, 3
        s_add_u32 s41, s41, {wave}
        s_lshl_b32 s41, s41, 7
        s_add_u32 s41, s41, {WS_ST}
        s_mov_b64 exec, 0xffff
        v_lshl_add_u32 v2, v1, 2, s41
        ''')
        for i in range(n):
            self(f'v_writelane_b32 v3, s{60 + 2 * i}, {i}')
        self('global_store_dword v2, v3, s[32:33]')


def wave_sum(g, regs, op='v_add_f32'):
    pad = max(0, 2 - (len(regs) - 1))
    for ctl in ('row_ror:1 ' + DPPF, 'row_ror:2 ' + DPPF, 'row_ror:4 ' + DPPF, 'row_ror:8 ' + DPPF,
                'row_bcast:15 row_mask:0xa bank_mask:0xf', 'row_bcast:31 row_mask:0xc bank_mask:0xf'):
        if pad:
            g(f's_nop {pad - 1}')
        for r in regs:
            g(f'{op}_dpp {r}, {r}, {r} {ctl}')


def bf_round(g, dst, src):
    g(f'v_cvt_pk_bf16_f32 {dst}, {src}, {src}')
    g(f'v_and_b32 {dst}, 0xffff0000, {dst}')


def layernorm_stats(g, e, t0, t1, smean, vmeanb, vrinv):
    g(f'''
    v_add_f32 {t0}, {e[0]}, {e[1]}
    v_add_f32 {t1}, {e[2]}, {e[3]}
    v_add_f32 {t0}, {t0}, {e[4]}
    v_add_f32 {t1}, {t1}, {e[5]}
    v_add_f32 {t0}, {t0}, {e[6]}
    v_add_f32 {t1}, {t1}, {e[7]}
    v_add_f32 {t0}, {t0}, {t1}
    ''')
    wave_sum(g, [t0])
    g(f'''
    v_mul_f32 {t0}, {hex(f2u(1.0 / 512))}, {t0}
    s_nop 0
    v_readlane_b32 {smean}, {t0}, 63
    s_nop 1
    v_subrev_f32 {t0}, {smean}, {e[0]}
    v_subrev_f32 {vmeanb}, {smean}, {e[1]}
    v_mul_f32 {t0}, {t0}, {t0}
    v_mul_f32 {t1}, {vmeanb}, {vmeanb}
    ''')
    for i in range(2, 8, 2):
        g(f'''
        v_subrev_f32 {vrinv}, {smean}, {e[i]}
        v_subrev_f32 {vmeanb}, {smean}, {e[i + 1]}
        v_fmac_f32 {t0}, {vrinv}, {vrinv}
        v_fmac_f32 {t1}, {vmeanb}, {vmeanb}
        ''')
    g(f'v_add_f32 {t0}, {t0}, {t1}')
    g(f'v_mov_b32 {vmeanb}, {smean}')
    wave_sum(g, [t0])
    g(f'v_mul_f32 {t0}, {hex(f2u(1.0 / 512))}, {t0}')
    bf_round(g, vmeanb, vmeanb)
    g(f'v_readlane_b32 {smean}, {t0}, 63')
    g('s_nop 1')
    g(f'v_mov_b32 {t0}, {smean}')
    bf_round(g, t0, t0)
    g(f'v_add_f32 {t0}, {hex(f2u(1e-5))}, {t0}')
    bf_round(g, t0, t0)
    g(f'v_sqrt_f32 {t0}, {t0}')
    g('s_nop 0')
    bf_round(g, t0, t0)
    g(f'v_rcp_f32 {vrinv}, {t0}')
    g('s_nop 0')


def masks(g, M4, M8, t0, t1):
    g(f'''
    v_and_b32 {t0}, 1, v1
    v_lshlrev_b32 {t0}, 4, {t0}
    v_mov_b32 {t1}, 0xffff
    v_lshlrev_b32 {t0}, {t0}, {t1}
    v_bfe_u32 {t1}, v1, 1, 2
    ''')
    for j in range(4):
        g(f'v_cmp_eq_u32 s[{44 + 2 * j}:{45 + 2 * j}], {j}, {t1}')
        g(f'v_mov_b32 v{M4 + j}, 0')
    for j in range(4):
        g(f'v_mov_b32_dpp v{M4 + j}, {t0} quad_perm:[0,1,2,3] row_mask:0xf bank_mask:{hex(1 << j)}')
        g(f'v_cndmask_b32 v{M8 + j}, 0, {t0}, s[{44 + 2 * j}:{45 + 2 * j}]')


def mfma(d, a, b, first):
    c = '0' if first else f'v[{d}:{d + 3}]'
    return f'v_mfma_f32_16x16x32_bf16 v[{d}:{d + 3}], v[{a}:{a + 3}], v[{b}:{b + 3}], {c}'


M4 = 192; M8 = 196


def gen_stream(g, o):
    NT = o['nt'] if isinstance(o['nt'], str) else ('nt' if o['nt'] else '')
    WNT = o['wnt'] if isinstance(o['wnt'], str) else ('nt' if o['wnt'] else '')
    WARM = o['warm']
    KR = 16; VR = 80; WO = 144; QB = 160; DT = 176; OA = 220; YA = 224
    nskip = [0]

    def wskip():
        if not WARM:
            return ''
        nskip[0] += 1
        g(f's_cbranch_execz L_ws{nskip[0]}')
        return f'L_ws{nskip[0]}:'
    g(f'''
    L_stream:
    ''')
    if o['ksplit']:
        g('s_load_dwordx8 s[24:31], s[0:1], 64\ns_load_dwordx2 s[32:33], s[0:1], 96')
    KV = o['kvmap']
    TPOS = None
    if o['bits']:
        KV = 9
        pos, xr = o['bits']
        TPOS = pos[5:7]
        g('''
        s_lshr_b32 s6, s3, 6
        s_sub_u32 s6, s6, 1
        s_lshl_b32 s7, s4, 21
        s_add_u32 s7, s7, 0x180000
        ''')
        src = {'w0': ('s6', 0), 'w1': ('s6', 1), 's0': ('s5', 0), 's1': ('s5', 1), 's2': ('s5', 2), 'j0': ('s4', 3), 'j1': ('s4', 4), 'x0': ('s4', 0), 'x1': ('s4', 1), 'x2': ('s4', 2)}
        for nm, p in list(zip(('w0', 'w1', 's0', 's1', 's2'), pos[:5])) + list(xr):
            r, b = src[nm]
            g(f's_bfe_u32 s35, {r}, {hex(0x10000 | b)}\ns_lshl_b32 s35, s35, {p}\ns_xor_b32 s7, s7, s35')
    elif KV == 0:
        TSH = 12
        g('''
        s_lshl_b32 s7, s4, 21
        s_lshl_b32 s35, s5, 16
        s_add_u32 s7, s7, s35
        s_lshl_b32 s35, s3, 8
        s_add_u32 s7, s7, s35
        s_and_b32 s35, s2, 24
        s_lshl_b32 s35, s35, 9
        s_add_u32 s7, s7, s35
        s_add_u32 s7, s7, 0x17c000
        ''')
    elif KV in (1, 2):
        TSH = 17
        g('''
        s_lshl_b32 s7, s4, 21
        s_lshl_b32 s35, s5, 14
        s_add_u32 s7, s7, s35
        s_lshl_b32 s35, s3, 6
        s_add_u32 s7, s7, s35
        s_add_u32 s7, s7, 0x17f000
        ''')
        if KV == 2:
            g('s_and_b32 s35, s2, 24\ns_lshl_b32 s35, s35, 14\ns_add_u32 s7, s7, s35')
    elif KV in (3, 5):
        TSH = 14
        g(f'''
        s_lshl_b32 s7, s4, 21
        s_lshl_b32 s35, s5, 16
        s_add_u32 s7, s7, s35
        s_lshl_b32 s35, s3, {6 if KV == 3 else 4}
        s_add_u32 s7, s7, s35
        s_add_u32 s7, s7, {hex(0x17f000 if KV == 3 else 0x180000 - 0x400 + 0x1000)}
        ''')
        rs = o['rs']
        if rs == 'j':
            g('s_and_b32 s35, s2, 24\ns_lshl_b32 s35, s35, 11')
        elif rs == 's':
            g('s_and_b32 s35, s5, 3\ns_lshl_b32 s35, s35, 14')
        elif rs == 'js':
            g('s_lshr_b32 s35, s2, 3\ns_xor_b32 s35, s35, s5\ns_and_b32 s35, s35, 3\ns_lshl_b32 s35, s35, 14')
        elif rs == 'x':
            g('s_and_b32 s35, s2, 3\ns_lshl_b32 s35, s35, 14')
        elif rs == 'j1':
            g('s_and_b32 s35, s2, 8\ns_lshl_b32 s35, s35, 11')
        elif rs == 's1':
            g('s_and_b32 s35, s5, 1\ns_lshl_b32 s35, s35, 14')
        if rs != 'n':
            g('s_add_u32 s7, s7, s35')
    g(f'''
    v_lshlrev_b32 v2, 4, v1
    v_and_b32 v3, 0x30, v2
    v_and_b32 v4, 0xc0, v2
    v_lshl_or_b32 v3, v4, 2, v3
    v_lshrrev_b32 v4, 4, v1
    v_lshl_or_b32 v3, v4, 6, v3
    v_add_u32 v{KR + 12}, s7, v3
    v_add_u32 v{VR + 12}, s7, v2
    ''')
    for T in range(1, 4):
        g(f'v_xor_b32 v{KR + 16 * T + 12}, {hex(T << TSH if TPOS is None else ((T & 1) << TPOS[0]) | ((T >> 1) << TPOS[1]))}, v{KR + 12}')
    for T in range(1, 4):
        g(f'v_xor_b32 v{VR + 16 * T + 12}, {hex(T << TSH if TPOS is None else ((T & 1) << TPOS[0]) | ((T >> 1) << TPOS[1]))}, v{VR + 12}')
    if KV == 5:
        for base in (KR, VR):
            for T in range(4):
                g(f'v_mov_b32 v{base + 16 * T + 4}, v{base + 16 * T + 12}')
                g(f'v_add_u32 v{base + 16 * T + 12}, 0x2000, v{base + 16 * T + 12}')
    g(f'''
    s_lshr_b32 s6, s3, 6
    s_sub_u32 s6, s6, 1
    s_and_b32 s35, s4, 3
    s_lshl_b32 s35, s35, 5
    s_lshl_b32 s37, s5, 7
    s_add_u32 s35, s35, s37
    v_and_b32 v5, 7, v1
    v_and_b32 v6, 1, v4
    v_lshlrev_b32 v6, 1, v6
    v_lshl_or_b32 v6, v5, 2, v6
    v_add_u32 v204, s35, v6
    v_lshrrev_b32 v9, 3, v1
    s_lshl_b32 s35, s5, 14
    s_and_b32 s38, s4, 3
    s_lshl_b32 s38, s38, 7
    s_add_u32 s35, s35, s38
    s_add_u32 s35, s35, {WS_B + 4096}
    v_lshlrev_b32 v8, 9, v9
    v_lshl_or_b32 v8, v5, 4, v8
    v_add_u32 v211, s35, v8
    v_add_u32 v212, 0x2000, v211
    v_add_u32 v218, {hex((WS_Y - WS_B) & 0xffffffff)}, v211
    v_add_u32 v219, 0x2000, v218
    {'v_add_u32 v245, 0x22000, v218' if o['yv'] == 2 else ''}
    {'v_add_u32 v246, 0x20000, v218' if o['yv'] == 2 else ''}
    ; s53 = 1 : this wave is a final reducer (wave 1 of the workgroups with h>>2 == s; 16 output columns each)
    s_lshr_b32 s35, s4, 2
    s_cmp_eq_u32 s35, s5
    s_cselect_b32 s53, s6, 0
    s_cmp_eq_u32 s53, 1
    s_waitcnt lgkmcnt(0)
    s_load_dword s34, s[32:33], 0
    s_cbranch_scc0 L_nosmall
    global_load_ushort v214, v204, s[8:9]
    global_load_ushort v215, v204, s[26:27]
    global_load_ushort v216, v204, s[28:29]
    ''')
    if o['ytouch'] in (1, 2, 3) and not o['ytaux']:
        f = {1: '', 2: 'sc1', 3: 'nt'}[o['ytouch']]
        g(f'''
        global_load_dword v216, v218, s[32:33] offset:-4096 {f}
        global_load_dword v216, v218, s[32:33] {f}
        global_load_dword v216, v219, s[32:33] offset:-4096 {f}
        global_load_dword v216, v219, s[32:33] {f}
        ''')
        if o['yv'] == 2:
            g(f'''
            global_load_dword v216, v245, s[32:33] offset:-4096 {f}
            global_load_dword v216, v245, s[32:33] {f}
            global_load_dword v216, v246, s[32:33] offset:-4096 {f}
            global_load_dword v216, v246, s[32:33] {f}
            ''')
    g(f'''
    L_nosmall:
    s_barrier
    ''')
    g.stamp(1)
    n = [0]
    fixed = [None]

    def vload(txt):
        w0, w1, i0, i1 = o['sched']
        x = min(1.0, max(0.0, (n[0] - i0) / float(i1 - i0)))
        thr = fixed[0] or int(round(w0 + (w1 - w0) * x))
        if thr != int(thr):
            thr = int(thr) + (n[0] & 1)
        thr = int(thr)
        if n[0] >= thr:
            g(f's_waitcnt vmcnt({thr - 1})')
        elif n[0] > 0 and o['gap']:
            g('s_nop 0')
        g(txt)
        n[0] += 1

    def tile(base, T, sp):
        if KV == 5:
            return [f'global_load_dwordx4 v[{base + 16 * T + 4 * i}:{base + 16 * T + 4 * i + 3}], v{base + 16 * T + (4 if i < 2 else 12)}, {sp} offset:{(-4096, 0)[i & 1]} {NT}' for i in range(4)]
        return [f'global_load_dwordx4 v[{base + 16 * T + 4 * i}:{base + 16 * T + 4 * i + 3}], v{base + 16 * T + 12}, {sp} offset:{1024 * i} {NT}' for i in range(4)]
    seq = []
    for T in range(4):
        seq += tile(KR, T, 's[10:11]')
    for T in range(4):
        seq += tile(VR, T, 's[12:13]')
    seq += [f'global_load_dwordx4 v[{WO + 4 * j}:{WO + 4 * j + 3}], v{WO + 12}, s[16:17] offset:{1024 * j} {WNT}' for j in range(4)]
    NB0 = int(round(4 * o['b0'])); NB1 = int(round(16 + 4 * o['b1']))
    NFIRST = int(min(8, int(o['sched'][0]), *(o['par'][0::2][:2] if o['par'] else [8])))
    pre = g.take()
    gap = o['gap']; o['gap'] = 0
    for l in seq[:NFIRST]:
        vload(l)
    first = g.take()
    g.stamp(2)
    masks(g, M4, M8, 'v7', 'v6')
    g(f'''
    v_and_b32 v7, 0x30, v2
    v_lshl_or_b32 v7, v4, 6, v7
    ''')
    for t in range(4):
        g(f'v_mov_b32 v{200 + t}, {L_ZERO}')
    for t in range(4):
        g(f'v_mov_b32_dpp v{200 + t}, v7 quad_perm:[0,1,2,3] row_mask:0xf bank_mask:{hex(1 << t)}')
    g(f'''
    s_lshl_b32 s36, s4, 3
    s_add_u32 s36, s36, s5
    s_lshl_b32 s36, s36, 10
    s_lshl_b32 s35, s4, 17
    s_add_u32 s35, s35, s37
    s_lshl_b32 s38, s6, 15
    s_add_u32 s35, s35, s38
    v_bfe_u32 v6, v1, 3, 1
    v_lshlrev_b32 v7, 13, v4
    v_lshl_or_b32 v7, v6, 12, v7
    v_lshl_or_b32 v7, v5, 4, v7
    v_add_u32 v{WO + 12}, s35, v7
    ''')
    if o['ogm']:
        g(f'''
        s_lshl_b32 s35, s4, 13
        s_add_u32 s35, s35, {WS_O}
        s_lshl_b32 s38, s6, 11
        s_add_u32 s38, s38, s35
        v_lshlrev_b32 v7, 4, v5
        v_lshl_or_b32 v7, v4, 9, v7
        v_lshl_or_b32 v7, v6, 8, v7
        v_add_u32 v205, s38, v7
        v_and_b32 v7, 15, v1
        v_lshlrev_b32 v8, 9, v7
        v_lshl_or_b32 v8, v4, 7, v8
        s_lshl4_add_u32 s35, s5, s35
        v_add_u32 v206, s35, v8
        ''')
    else:
        g(f'''
    s_lshl_b32 s35, s4, 13
    s_lshl_b32 s38, s6, 8
    s_add_u32 s35, s35, s38
    s_add_u32 s35, s35, {WS_O}
    v_lshlrev_b32 v7, 10, v5
    v_lshl_or_b32 v7, v4, 6, v7
    v_lshl_or_b32 v7, v6, 5, v7
    v_add_u32 v205, s35, v7
    v_and_b32 v7, 15, v1
    v_lshlrev_b32 v8, 6, v7
    v_lshl_or_b32 v8, v4, 4, v8
    s_add_u32 s35, s36, {WS_O}
    v_add_u32 v206, s35, v8
        ''')
    g(f'''
    s_lshl_b32 s35, s6, 9
    s_add_u32 s35, s35, {L_O}
    v_lshl_add_u32 v207, v1, 3, s35
    s_mul_i32 s35, s6, 1280
    s_add_u32 s35, s35, {L_Y}
    v_mul_u32_u24 v8, 320, v4
    v_lshl_add_u32 v8, v7, 4, v8
    v_add_u32 v208, s35, v8
    v_bfe_u32 v8, v1, 2, 1
    v_mul_u32_u24 v8, 320, v8
    v_lshrrev_b32 v9, 3, v1
    v_lshl_add_u32 v8, v9, 4, v8
    v_and_b32 v10, 3, v1
    v_lshl_add_u32 v8, v10, 2, v8
    v_add_u32 v209, {L_Y}, v8
    s_lshl_b32 s35, s5, 5
    s_add_u32 s35, s35, s4
    s_lshl_b32 s35, s35, 9
    s_add_u32 s35, s35, {WS_Y}
    v_lshl_add_u32 v210, v1, 3, s35
    {'v_xor_b32 v244, 0x22000, v210' if o['yv'] == 2 else ''}
    s_lshl_b32 s39, s6, 2
    v_mov_b32 v213, s39
    v_and_b32 v8, 1, v4
    v_cmp_eq_u32 s[42:43], 1, v8
    s_mov_b32 s40, {SPIN}
    s_waitcnt lgkmcnt(0)
    s_add_u32 s34, s34, 0x01010101
    ''')
    setup = g.take()
    mixed = []
    for l in first:
        mixed.append(l)
        k = gap
        while k > 0 and setup:
            x = setup.pop(0)
            mixed.append(x)
            if not x.strip().startswith(';'):
                k -= 1
    g.L = pre + mixed + setup

    def run_to_b1(upto):
        for i in range(NFIRST, upto):
            vload(seq[i])
            if i + 1 == NB0:
                if 'b' not in o['skip']:
                    g('s_barrier')
                g.stamp(3)
                fixed[0] = o['thr2']
    NEND = len(seq) if o['pure'] else NB1
    if o['par']:
        e0, e1, o0, o1 = o['par'][:4]
        classes = [('even', e0, e1), ('odd', o0, o1)]
        if o['slot3']:
            classes.append(('s3',) + tuple(o['slot3']))
            g('s_lshr_b32 s35, s2, 5\ns_cmp_eq_u32 s35, 3\ns_cbranch_scc1 L_s3')
        g('s_getreg_b32 s35, hwreg(HW_REG_XCC_ID, 0, 1)')
        g('s_cmp_eq_u32 s35, 1')
        g('s_cbranch_scc1 L_odd')
        base = n[0]
        for k, (nm, a, b) in enumerate(classes):
            if k:
                g(f'L_{nm}:')
            n[0] = base; fixed[0] = a; o['thr2'] = b
            run_to_b1(NEND)
            if k + 1 < len(classes):
                g('s_branch L_join')
        g('L_join:')
    else:
        run_to_b1(NEND)
    rest = seq[NEND:]
    if o['pure']:
        g.stamp(4)
        for l in rest:
            vload(l)
        g('s_waitcnt vmcnt(4)')
        for i in (5, 6, 7, 11): g.stamp(i)
        g('s_waitcnt vmcnt(0)')
        for i in (8, 9, 10): g.stamp(i)
        if o.get('fin') is not None:
            g(f'''
            s_cmp_eq_u32 s53, 1
            s_cbranch_scc0 L_end
            s_mov_b64 exec, 0x00ff00ff
            global_store_short v204, v176, s[28:29] {o['fin']}
            ''')
        g('s_add_u32 s6, s6, 1')
        g.stamp_out(13, 's6')
        g('s_endpgm')

    npw = [0]

    def parwait():
        if o['par'] and len(o['par']) > 4:
            npw[0] += 1
            g(f's_cbranch_scc1 L_pw{npw[0]}x')
            g(f's_waitcnt vmcnt({o["par"][4] - 1})')
            g(f'L_pw{npw[0]}x:')

    def sprinkle(k):
        k = min(k, len(rest))
        if k == 0:
            return
        lab = wskip()
        parwait()
        for _ in range(k):
            if o['spthr']:
                g(f's_waitcnt vmcnt({o["spthr"] - 1})')
            g(rest.pop(0))
        g(lab)
    g.stamp(4)
    g('s_barrier')
    g.stamp(5)
    g('L_warm1:')
    for t in range(4):
        g(f'ds_read_b128 v[{QB + 4 * t}:{QB + 4 * t + 3}], v{200 + t}')
    g(f'''
    v_mov_b32 v13, 0
    ds_read_b32 v13, v13 offset:{L_FLAG}
    s_waitcnt vmcnt({NB1 - 16}) lgkmcnt(0)
    ''')
    for tp in range(4):
        for T in range(4):
            g(mfma(DT + 4 * T, KR + 16 * T + 4 * tp, QB + 4 * tp, tp == 0))
    g('v_readfirstlane_b32 s52, v13')
    sprinkle(o['sp'][0])
    g('s_nop 3')
    for r in range(4):
        for T in range(4):
            if r == 0:
                g(f'v_mov_b32_dpp v{8 + T}, v{DT + 4 * T} quad_perm:[0,0,0,0] {DPPF}')
            else:
                g(f'v_add_f32_dpp v{8 + T}, v{DT + 4 * T + r}, v{8 + T} quad_perm:[{r},{r},{r},{r}] {DPPF}')
    g('; s = bf16(bf16(q.k) * 128^-0.5), true max over the workgroup (B2), p = exp(s - max), l = sum p')
    sc = hex(f2u(128 ** -0.5))
    g(f'''
    v_cvt_pk_bf16_f32 v12, v8, v9
    v_cvt_pk_bf16_f32 v13, v10, v11
    v_lshlrev_b32 v8, 16, v12
    v_and_b32 v9, 0xffff0000, v12
    v_lshlrev_b32 v10, 16, v13
    v_and_b32 v11, 0xffff0000, v13
    v_mul_f32 v8, {sc}, v8
    v_mul_f32 v9, {sc}, v9
    v_mul_f32 v10, {sc}, v10
    v_mul_f32 v11, {sc}, v11
    v_cvt_pk_bf16_f32 v12, v8, v9
    v_cvt_pk_bf16_f32 v13, v10, v11
    v_lshlrev_b32 v8, 16, v12
    v_and_b32 v9, 0xffff0000, v12
    v_lshlrev_b32 v10, 16, v13
    v_and_b32 v11, 0xffff0000, v13
    v_max_f32 v12, v8, v9
    v_max3_f32 v12, v10, v11, v12
    s_nop 1
    v_max_f32_dpp v12, v12, v12 row_ror:4 {DPPF}
    s_nop 1
    v_max_f32_dpp v12, v12, v12 row_ror:8 {DPPF}
    s_nop 1
    v_max_f32_dpp v12, v12, v12 row_bcast:15 row_mask:0xa bank_mask:0xf
    s_nop 1
    v_max_f32_dpp v12, v12, v12 row_bcast:31 row_mask:0xc bank_mask:0xf
    s_nop 0
    v_readlane_b32 s35, v12, 63
    v_mov_b32 v13, 0
    s_nop 0
    v_mov_b32 v12, s35
    ds_write_b32 v213, v12 offset:{L_MAX}
    ''')
    lab = wskip()
    if rest: parwait()
    for _ in range(min(o['sp'][1], len(rest))):
        if o['spthr']:
            g(f's_waitcnt vmcnt({o["spthr"] - 1})')
        g(rest.pop(0))
    g(f'''
    s_waitcnt lgkmcnt(0)
    s_barrier
    {lab}
    ds_read_b128 v[176:179], v13 offset:{L_MAX}
    s_mov_b32 s35, {hex(f2u(LOG2E))}
    s_waitcnt lgkmcnt(0)
    v_max_f32 v12, v176, v177
    v_max3_f32 v12, v178, v179, v12
    v_mul_f32 v217, s35, v12
    v_fma_f32 v8, v8, s35, -v217
    v_fma_f32 v9, v9, s35, -v217
    v_fma_f32 v10, v10, s35, -v217
    v_fma_f32 v11, v11, s35, -v217
    v_exp_f32 v8, v8
    v_exp_f32 v9, v9
    v_exp_f32 v10, v10
    v_exp_f32 v11, v11
    ''')
    sprinkle(o['sp'][2])
    g(f'''
    s_nop 0
    v_add_f32 v12, v8, v9
    v_add_f32 v13, v10, v11
    v_cvt_pk_bf16_f32 v8, v8, v8
    v_add_f32 v12, v12, v13
    v_cvt_pk_bf16_f32 v9, v9, v9
    v_cvt_pk_bf16_f32 v10, v10, v10
    v_add_f32_dpp v12, v12, v12 row_ror:4 {DPPF}
    v_cvt_pk_bf16_f32 v11, v11, v11
    ''')
    thread = [f'v_add_f32_dpp v12, v12, v12 row_ror:8 {DPPF}',
              'v_add_f32_dpp v12, v12, v12 row_bcast:15 row_mask:0xa bank_mask:0xf',
              'v_add_f32_dpp v12, v12, v12 row_bcast:31 row_mask:0xc bank_mask:0xf',
              'v_readlane_b32 s35, v12, 63',
              'v_mov_b32 v12, s35',
              f'ds_write_b32 v213, v12 offset:{L_SUM}']
    for t in range(16):
        for j in range(4):
            g(f'v_and_b32_dpp v{KR + 4 * t + j}, v{8 + t // 4}, v{M4 + j} row_newbcast:{4 * (t % 4)} {DPPF}')
        if t < len(thread):
            g(thread[t])
        if t == 7:
            sprinkle((len(rest) + 1) // 2)
    sprinkle(99)
    g.stamp(6)
    for t in range(16):
        if t in (0, 4, 8):
            g(f's_waitcnt vmcnt({19 - (t + 3)})')
        elif t >= 12:
            g(f's_waitcnt vmcnt({19 - t})')
        g(mfma(OA, KR + 4 * t, VR + 4 * t, t == 0))
    g.stamp(7)
    g(f'''
    s_cmp_eq_u32 s6, 0
    v_mov_b32 v13, 0
    s_nop 5
    ds_write_b64 v207, v[{OA}:{OA + 1}]
    s_waitcnt lgkmcnt(0)
    s_barrier
    ''')
    g.stamp(11)
    g(f'''
    ; B3 passed: wave 1 of the workgroup (w = 0) adds the four partial o, publishes {{o0, o1, tag, max|sum}} per lane
    s_cbranch_scc0 L_pub1
    {'s_waitcnt lgkmcnt(0)' if o['diag'] else ''}
    ds_read2st64_b64 v[176:179], v207 offset0:1 offset1:2
    ds_read_b64 v[180:181], v207 offset:1536
    ds_read_b128 v[184:187], v13 offset:{L_SUM}
    v_mov_b32 v{OA + 2}, s34
    s_cmp_eq_u32 s52, {0 if o['loc'] else -1}
    s_waitcnt lgkmcnt(2)
    v_pk_add_f32 v[{OA}:{OA + 1}], v[{OA}:{OA + 1}], v[176:177]
    s_waitcnt lgkmcnt(1)
    v_pk_add_f32 v[178:179], v[178:179], v[180:181]
    s_waitcnt lgkmcnt(0)
    v_pk_add_f32 v[184:185], v[184:185], v[186:187]
    v_pk_add_f32 v[{OA}:{OA + 1}], v[{OA}:{OA + 1}], v[178:179]
    v_add_f32 v184, v184, v185
    ''')
    lab = wskip()
    g(f'''
    v_cndmask_b32 v{OA + 3}, v217, v184, s[42:43]
    s_cbranch_scc0 L_farpub
    global_store_dwordx4 v206, v[{OA}:{OA + 3}], s[32:33] {o['ostf']}
    L_pub1:
    ''')
    bl = '''
    s_cmp_eq_u32 s53, 1
    s_cbranch_scc0 L_nob
    global_load_dwordx4 v[228:231], v211, s[32:33] offset:-4096 sc1
    global_load_dwordx4 v[232:235], v211, s[32:33] sc1
    global_load_dwordx4 v[236:239], v212, s[32:33] offset:-4096 sc1
    global_load_dwordx4 v[240:243], v212, s[32:33] sc1
    L_nob:
    '''
    if not o['blate']:
        g(bl)
    g(f'''
    {'s_barrier' if o['b3b'] else ''}
    {'s_memrealtime s[64:65]' if o.get('wost') else ''}
    {'s_waitcnt vmcnt(0)' if o.get('wost') else ''}
    {'s_memrealtime s[72:73]' if o.get('wost') else ''}
    {'s_branch L_poll1' if o['sleep1'] else ''}
    L_again1:
    {f's_sleep {o["sleep1"]}' if o['sleep1'] else ''}
    L_poll1:
    global_load_dwordx4 v[176:179], v205, s[32:33] sc1
    global_load_dwordx4 v[180:183], v205, s[32:33] offset:{128 if o['ogm'] else 16} sc1
    s_sub_u32 s40, s40, 1
    s_cbranch_scc1 L_end
    s_waitcnt vmcnt(0)
    v_bitop3_b32 v8, v178, v182, s34 bitop3:0x7e
    v_cmp_ne_u32 vcc, 0, v8
    ''')
    if o['shrink']:
        g('''
        s_and_b64 exec, vcc, vcc
        s_cbranch_scc1 L_again1
        s_mov_b64 exec, -1
        ''')
    else:
        g('s_cbranch_vccnz L_again1')
    if o['blate']:
        g(bl)
    g(f'''
    {lab}
    ''')
    g.stamp(8)
    if o['diag']:
        g(f's_sub_u32 s84, {SPIN}, s40')
    if o.get('pflag') == 1:
        g('s_cmp_eq_u32 s52, 0\ns_cselect_b32 s84, 0, 500\ns_waitcnt lgkmcnt(0)\ns_add_u32 s84, s84, s60')
    if o.get('pflag') == 2:
        g('s_mul_i32 s84, s84, 50\ns_waitcnt lgkmcnt(0)\ns_add_u32 s84, s84, s60')
    g(f'''
    ; merge the eight splits (exact max / sum rescale), normalise, round to bf16, multiply with the wo slice
    v_max_f32_dpp v8, v179, v179 quad_perm:[1,0,3,2] {DPPF}
    s_nop 1
    v_max_f32_dpp v8, v8, v8 quad_perm:[2,3,0,1] {DPPF}
    s_nop 1
    v_max_f32_dpp v8, v8, v8 row_half_mirror {DPPF}
    v_sub_f32 v8, v179, v8
    v_exp_f32 v8, v8
    s_cmp_eq_u32 s6, 0
    v_mul_f32 v183, v8, v183
    v_pk_mul_f32 v[176:177], v[8:9], v[176:177] op_sel_hi:[0,1]
    v_pk_mul_f32 v[180:181], v[8:9], v[180:181] op_sel_hi:[0,1]
    ''')
    for ctl in ('quad_perm:[1,0,3,2]', 'quad_perm:[2,3,0,1]', 'row_half_mirror'):
        for r in (183, 176, 177, 180, 181):
            g(f'v_add_f32_dpp v{r}, v{r}, v{r} {ctl} {DPPF}')
        if ctl == 'row_half_mirror':
            g.L.insert(len(g.L) - 2, '    v_rcp_f32 v8, v183')
    src = (176, 177, 180, 181)
    g('v_pk_mul_f32 v[176:177], v[8:9], v[176:177] op_sel_hi:[0,1]')
    g('v_pk_mul_f32 v[180:181], v[8:9], v[180:181] op_sel_hi:[0,1]')
    g('v_mov_b32 v9, s34')
    for j in range(4):
        g(f'v_cvt_pk_bf16_f32 v{src[j]}, v{src[j]}, v{src[j]}')
    for j in range(5):
        if j < 4:
            for jj in range(4):
                g(f'v_and_b32 v{KR + 4 * j + jj}, v{src[j]}, v{M8 + jj}')
        else:
            g('s_nop 0')
        if j >= 1:
            g(mfma(YA, KR + 4 * (j - 1), WO + 4 * (j - 1), j == 1))
    lab = wskip()
    g(f'''
    s_nop {6 if WARM else 7}
    ds_write_b128 v208, v[{YA}:{YA + 3}]
    s_waitcnt lgkmcnt(0)
    s_barrier
    s_cbranch_scc0 L_notw0
    {lab}
    ''')
    g('; B4 passed: w = 0 adds the eight partial y per column and publishes {y, tag}')
    for w in range(4):
        g(f'ds_read_b32 v{176 + 2 * w}, v209 offset:{1280 * w}')
        g(f'ds_read_b32 v{177 + 2 * w}, v209 offset:{1280 * w + 768}')
    if WARM:
        g('s_cbranch_execz L_warm2')
    g(f'''
    s_waitcnt lgkmcnt(4)
    v_pk_add_f32 v[176:177], v[176:177], v[178:179]
    s_waitcnt lgkmcnt(0)
    v_pk_add_f32 v[180:181], v[180:181], v[182:183]
    v_pk_add_f32 v[176:177], v[176:177], v[180:181]
    v_add_f32 v8, v176, v177
    global_store_dwordx2 v210, v[8:9], s[32:33] sc1
    ''')
    if o['yv'] == 2:
        g('global_store_dwordx2 v244, v[8:9], s[32:33] sc1')
    if o['oclean'] and o['ogm']:
        g(f'''
        s_lshl_b32 s35, s5, 1
        s_lshl_b32 s35, 0x00030003, s35
        s_mov_b32 exec_lo, s35
        s_mov_b32 exec_hi, s35
        global_store_dwordx4 v206, v[{OA}:{OA + 3}], s[32:33] sc1
        ''')
    g.stamp(9)
    g.stamp_out(13, '1')
    g('s_endpgm')
    g('; ---- final reducer: gate = silu(MLP) while the y partials are in flight, then out = x + bf16(sum y) * gate')
    g('L_notw0:')
    g.stamp(9)
    g(f'''
    s_cmp_eq_u32 s53, 1
    s_cbranch_scc0 L_done
    L_warm2:
    ''')

    def yloads():
        g('''
        global_load_dwordx4 v[176:179], v218, s[32:33] offset:-4096 sc1
        global_load_dwordx4 v[180:183], v218, s[32:33] sc1
        global_load_dwordx4 v[184:187], v219, s[32:33] offset:-4096 sc1
        global_load_dwordx4 v[188:191], v219, s[32:33] sc1
        ''')
        if o['yv'] == 2:
            g('''
            global_load_dwordx4 v[16:19], v245, s[32:33] offset:-4096 sc1
            global_load_dwordx4 v[20:23], v245, s[32:33] sc1
            global_load_dwordx4 v[24:27], v246, s[32:33] offset:-4096 sc1
            global_load_dwordx4 v[28:31], v246, s[32:33] sc1
            ''')

    def tail(r):
        g(f'''
        v_add_f32_dpp v{r}, v{r}, v{r} row_ror:8 {DPPF}
        v_add_f32_dpp v{r + 2}, v{r + 2}, v{r + 2} row_ror:8 {DPPF}
        s_nop 1
        v_permlane16_swap_b32 v{r}, v{r + 2}
        v_add_f32 v{r}, v{r}, v{r + 2}
        v_mov_b32 v{r + 2}, v{r}
        s_nop 1
        v_permlane32_swap_b32 v{r}, v{r + 2}
        v_add_f32 v{r}, v{r}, v{r + 2}
        v_cvt_pk_bf16_f32 v{r}, v{r}, v{r}
        v_and_b32 v{r}, 0xffff0000, v{r}
        ''')

    def fold1(r, lab):
        g(f'''
        s_waitcnt vmcnt(2)
        v_bitop3_b32 v8, v{r + 1}, v{r + 3}, s34 bitop3:0x7e
        v_bitop3_b32 v9, v{r + 5}, v{r + 7}, s34 bitop3:0x7e
        s_waitcnt vmcnt(0)
        v_bitop3_b32 v10, v{r + 9}, v{r + 11}, s34 bitop3:0x7e
        v_bitop3_b32 v11, v{r + 13}, v{r + 15}, s34 bitop3:0x7e
        v_or3_b32 v8, v8, v9, v10
        v_or_b32 v8, v8, v11
        v_cmp_ne_u32 vcc, 0, v8
        s_cbranch_vccnz {lab}
        v_add_f32 v{r}, v{r}, v{r + 4}
        v_add_f32 v{r + 2}, v{r + 2}, v{r + 6}
        v_add_f32 v{r + 8}, v{r + 8}, v{r + 12}
        v_add_f32 v{r + 10}, v{r + 10}, v{r + 14}
        v_add_f32 v{r}, v{r}, v{r + 8}
        v_add_f32 v{r + 2}, v{r + 2}, v{r + 10}
        s_nop 0
        ''')
        tail(r)

    def fold2(r, q, lab):
        g('s_waitcnt vmcnt(4)')
        for i in range(4):
            g(f'v_bitop3_b32 v{8 + i}, v{r + 4 * i + 1}, v{r + 4 * i + 3}, s34 bitop3:0x7e')
        for i in range(4):
            g(f'v_cmp_eq_u32 s[{44 + 2 * i}:{45 + 2 * i}], 0, v{8 + i}')
        for i in range(4):
            g(f's_waitcnt vmcnt({3 - i})')
            g(f'v_bitop3_b32 v{12}, v{q + 4 * i + 1}, v{q + 4 * i + 3}, s34 bitop3:0x7e')
            g(f'v_cndmask_b32 v{r + 4 * i}, v{q + 4 * i}, v{r + 4 * i}, s[{44 + 2 * i}:{45 + 2 * i}]')
            g(f'v_min_u32 v{8 + i}, v{8 + i}, v12')
            g(f'v_cndmask_b32 v{r + 4 * i + 2}, v{q + 4 * i + 2}, v{r + 4 * i + 2}, s[{44 + 2 * i}:{45 + 2 * i}]')
        g(f'''
        v_or3_b32 v8, v8, v9, v10
        v_or_b32 v8, v8, v11
        v_cmp_ne_u32 vcc, 0, v8
        v_add_f32 v{r}, v{r}, v{r + 4}
        v_add_f32 v{r + 2}, v{r + 2}, v{r + 6}
        s_cbranch_vccnz {lab}
        v_add_f32 v{r + 8}, v{r + 8}, v{r + 12}
        v_add_f32 v{r + 10}, v{r + 10}, v{r + 14}
        v_add_f32 v{r}, v{r}, v{r + 8}
        v_add_f32 v{r + 2}, v{r + 2}, v{r + 10}
        s_nop 0
        ''')
        tail(r)

    def fold(r, lab, waits):
        g(f'''
        {'s_waitcnt vmcnt(2)' if waits else ''}
        v_bitop3_b32 v8, v{r + 1}, v{r + 3}, s34 bitop3:0x7e
        v_bitop3_b32 v9, v{r + 5}, v{r + 7}, s34 bitop3:0x7e
        v_add_f32 v{r}, v{r}, v{r + 4}
        v_add_f32 v{r + 2}, v{r + 2}, v{r + 6}
        {'s_waitcnt vmcnt(0)' if waits else ''}
        v_bitop3_b32 v10, v{r + 9}, v{r + 11}, s34 bitop3:0x7e
        v_bitop3_b32 v11, v{r + 13}, v{r + 15}, s34 bitop3:0x7e
        v_or3_b32 v8, v8, v9, v10
        v_or_b32 v8, v8, v11
        v_cmp_ne_u32 vcc, 0, v8
        v_add_f32 v{r + 8}, v{r + 8}, v{r + 12}
        v_add_f32 v{r + 10}, v{r + 10}, v{r + 14}
        v_add_f32 v{r}, v{r}, v{r + 8}
        v_add_f32 v{r + 2}, v{r + 2}, v{r + 10}
        s_cbranch_vccnz {lab}
        v_add_f32_dpp v{r}, v{r}, v{r} row_ror:8 {DPPF}
        v_add_f32_dpp v{r + 2}, v{r + 2}, v{r + 2} row_ror:8 {DPPF}
        s_nop 1
        v_permlane16_swap_b32 v{r}, v{r + 2}
        v_add_f32 v{r}, v{r}, v{r + 2}
        v_mov_b32 v{r + 2}, v{r}
        s_nop 1
        v_permlane32_swap_b32 v{r}, v{r + 2}
        v_add_f32 v{r}, v{r}, v{r + 2}
        v_cvt_pk_bf16_f32 v{r}, v{r}, v{r}
        v_and_b32 v{r}, 0xffff0000, v{r}
        ''')
    lab = wskip()
    yloads()
    g(lab)
    g('''
    v_lshlrev_b32 v214, 16, v214
    v_lshlrev_b32 v215, 16, v215
    ''')
    if o['blate']:
        g(f's_waitcnt vmcnt({8 if o["yv"] == 2 else 4})')
    g('''
    L_chkb:
    ''')
    fold(228, 'L_retryb', False)
    g(f'''
    v_add_f32 v228, v228, v215
    v_cvt_pk_bf16_f32 v228, v228, v228
    v_and_b32 v228, 0xffff0000, v228
    v_mul_f32 v8, {hex(f2u(-LOG2E))}, v228
    v_exp_f32 v8, v8
    s_nop 0
    v_add_f32 v8, 1.0, v8
    v_rcp_f32 v8, v8
    s_nop 0
    v_mul_f32 v215, v228, v8
    v_cvt_pk_bf16_f32 v215, v215, v215
    v_and_b32 v215, 0xffff0000, v215
    s_branch L_chky
    L_poll2:
    ''')
    yloads()
    g('''
    s_sub_u32 s40, s40, 1
    s_cbranch_scc1 L_end
    L_chky:
    ''')
    if o['yv'] == 0:
        fold(176, 'L_poll2', True)
    elif o['yv'] == 1:
        fold1(176, 'L_poll2')
    else:
        fold2(176, 16, 'L_poll2')
    g(f'''
    v_mul_f32 v176, v176, v215
    v_cvt_pk_bf16_f32 v176, v176, v176
    v_and_b32 v176, 0xffff0000, v176
    v_add_f32 v176, v176, v214
    {'s_cbranch_execz L_warm3' if WARM else ''}
    v_cvt_pk_bf16_f32 v176, v176, v176
    s_mov_b64 exec, 0x00ff00ff
    global_store_short v204, v176, s[28:29] {o['outf']}
    s_cmp_eq_u32 s2, 0
    s_cbranch_scc0 L_done
    v_mov_b32 v8, 0
    v_mov_b32 v9, s34
    s_mov_b64 exec, 1
    global_store_dword v8, v9, s[32:33] {o.get('epf', '')}
    L_done:
    ''')
    g.stamp(10)
    if o['diag']:
        g('s_add_u32 s6, s6, 1')
    g.stamp_out(13, 's6')
    if o['probe']:
        probe(g, o)
    g(f'''
    L_end:
    s_endpgm
    L_retryb:
    global_load_dwordx4 v[228:231], v211, s[32:33] offset:-4096 sc1
    global_load_dwordx4 v[232:235], v211, s[32:33] sc1
    global_load_dwordx4 v[236:239], v212, s[32:33] offset:-4096 sc1
    global_load_dwordx4 v[240:243], v212, s[32:33] sc1
    s_sub_u32 s40, s40, 1
    s_cbranch_scc1 L_end
    s_waitcnt vmcnt(0)
    s_branch L_chkb
    L_farpub:
    global_store_dwordx4 v206, v[{OA}:{OA + 3}], s[32:33] sc1
    s_branch L_pub1
    ''')


def probe(g, o):
    wv, idx, kind, K = o['probe']
    mm = 'v_max_u32' if kind == 'max' else 'v_min_u32'
    g(f'''
    s_cmp_eq_u32 s2, 0
    s_cbranch_scc0 L_end
    s_cmp_eq_u32 s6, 2
    s_cbranch_scc0 L_end
    s_mov_b64 exec, -1
    s_memrealtime s[50:51]
    s_waitcnt lgkmcnt(0)
    L_pw:
    s_memrealtime s[52:53]
    s_waitcnt lgkmcnt(0)
    s_sub_u32 s52, s52, s50
    s_cmp_lt_u32 s52, 300
    s_cbranch_scc1 L_pw
    v_lshlrev_b32 v2, 10, v1
    v_add_u32 v2, {WS_ST}, v2
    ''')
    for i in range(4):
        g(f'global_load_dword v{8 + i}, v2, s[32:33] sc1')
        g(f'global_load_dword v{12 + i}, v2, s[32:33] offset:{wv * 128 + idx * 4} sc1')
        g('v_add_u32 v2, 0x10000, v2')
    g(f'''
    s_waitcnt vmcnt(0)
    v_min_u32 v8, v8, v9
    v_min_u32 v10, v10, v11
    v_min_u32 v8, v8, v10
    {mm} v12, v12, v13
    {mm} v14, v14, v15
    {mm} v12, v12, v14
    ''')
    wave_sum(g, ['v8'], 'v_min_u32')
    wave_sum(g, ['v12'], mm)
    g(f'''
    s_nop 1
    v_readlane_b32 s52, v8, 63
    v_readlane_b32 s53, v12, 63
    s_nop 3
    s_sub_u32 s54, s53, s52
    ''')
    if kind == 'raw':
        g(f'''
        v_mov_b32 v2, {WS_ST + 0x100000}
        global_load_dword v2, v2, s[32:33] sc1
        s_waitcnt vmcnt(0)
        v_readfirstlane_b32 s54, v2
        s_nop 3
        ''')
    g(f'''
    s_min_u32 s54, s54, 3000
    s_mul_i32 s54, s54, {K}
    s_add_u32 s54, s54, 400
    L_pw2:
    s_memrealtime s[52:53]
    s_waitcnt lgkmcnt(0)
    s_sub_u32 s52, s52, s50
    s_cmp_lt_u32 s52, s54
    s_cbranch_scc1 L_pw2
    ''')


def gen_aux(g, o):
    WNT = o['wnt'] if isinstance(o['wnt'], str) else ('nt' if o['wnt'] else '')
    WARM = o['warm']
    YT = 1 if o['ytouch'] >= 4 else 0
    WQ = 16; W1 = 80; W2 = 144; E = [f'v{168 + i}' for i in range(8)]; AS = (176, 180); QA = 184; ZA = 188
    g(f'''
    L_aux:
    s_setprio 3
    {'s_lshr_b32 s58, s2, 3' if o['qlin'] else 's_mov_b32 s58, s4'}
    {'s_and_b32 s59, s2, 7' if o['qlin'] else 's_mov_b32 s59, s5'}
    v_and_b32 v2, 15, v1
    v_lshrrev_b32 v3, 4, v1
    v_lshlrev_b32 v10, 4, v1
    s_lshl_b32 s6, s59, 7
    v_lshlrev_b32 v11, 1, v3
    v_lshl_or_b32 v11, v2, 3, v11
    v_add_u32 v8, s6, v11
    s_lshl_b32 s7, s59, 19
    s_lshl_b32 s35, s58, 8
    s_add_u32 s7, s7, s35
    v_lshlrev_b32 v12, 4, v2
    v_lshl_or_b32 v13, v3, 13, v12
    v_add_u32 v{WQ}, s7, v13
    s_mov_b32 s38, 0x8000
    ''')
    if o.get('st8'): g.stamp(8)
    g('s_waitcnt lgkmcnt(0)')
    g.stamp(1)
    g('''
    global_load_dwordx4 v[4:7], v10, s[8:9]
    global_load_ushort v8, v8, s[8:9]
    ''')
    if o['ksplit']:
        g('s_load_dwordx8 s[24:31], s[0:1], 64\ns_load_dwordx2 s[32:33], s[0:1], 96')
    else:
        g('s_load_dword s34, s[32:33], 0')
    for t in range(16):
        r = WQ + 4 * t
        if t < 15:
            g(f'v_add_u32 v{r + 4}, s38, v{r}')
        g(f'global_load_dwordx4 v[{r}:{r + 3}], v{r}, s[14:15] {WNT}')
    g(f'''
    ''')
    if o['qlin']:
        g(f'''
        s_mul_i32 s35, s58, 43
        s_lshr_b32 s35, s35, 3
        s_lshl_b32 s35, s35, 4
        s_mul_i32 s7, s59, {64 * 2752}
        s_add_u32 s7, s7, s35
        s_mul_i32 s36, s4, 43
        s_add_u32 s37, s36, 43
        s_lshr_b32 s36, s36, 3
        s_lshr_b32 s37, s37, 3
        s_sub_u32 s37, s37, s36
        s_lshl_b32 s35, s36, 4
        s_lshl_b32 s6, s5, 7
        ''')
    else:
        g(f'''
    s_and_b32 s36, s4, 7
    s_lshr_b32 s37, s4, 3
    s_lshl2_add_u32 s36, s36, s37
    s_mul_i32 s36, s36, 43
    s_add_u32 s37, s36, 43
    s_lshr_b32 s36, s36, 3
    s_lshr_b32 s37, s37, 3
    s_sub_u32 s37, s37, s36
    s_mul_i32 s7, s5, {64 * 2752}
    s_lshl_b32 s35, s36, 4
    s_add_u32 s7, s7, s35
        ''')
    g(f'''
    v_mul_u32_u24 v13, 2752, v3
    v_add3_u32 v{W1}, v13, v12, s7
    v_lshl_or_b32 v203, v3, 2, v12
    ''')
    if o['mergez']:
        g('''
        v_and_b32 v9, 7, v2
        v_min_u32 v9, 5, v9
        v_lshlrev_b32 v9, 4, v9
        v_lshl_or_b32 v9, v3, 2, v9
        v_lshrrev_b32 v13, 3, v2
        v_lshl_or_b32 v9, v13, 1, v9
        v_add_u32 v9, s35, v9
        ''')
    else:
        g('v_add_u32 v9, s35, v203')
    g(f'''
    s_lshl_b32 s7, s36, 13
    s_add_u32 s7, s7, s6
    v_lshrrev_b32 v13, 3, v2
    v_lshl_or_b32 v13, v3, 1, v13
    v_lshlrev_b32 v13, 10, v13
    v_and_b32 v14, 7, v2
    v_lshl_or_b32 v13, v14, 4, v13
    v_add_u32 v{W2}, s7, v13
    s_movk_i32 s38, 11008
    s_movk_i32 s39, 8192
    s_mov_b32 s54, 0x003f003f
    s_mov_b32 s55, s54
    s_mov_b64 exec, s[54:55]
    ''')
    for t in range(16):
        r = W1 + 4 * t
        if t < 15:
            g(f'v_add_u32 v{r + 4}, s38, v{r}')
        g(f'global_load_dwordx4 v[{r}:{r + 3}], v{r}, s[20:21] {WNT}')
    if o['ksplit']:
        g('s_waitcnt lgkmcnt(0)\ns_load_dword s34, s[32:33], 0')
    if o['mergez']:
        g('s_mov_b64 exec, -1')
        g('global_load_ushort v9, v9, s[22:23]')
    else:
        g('global_load_dword v9, v9, s[22:23]')
        g('s_mov_b64 exec, -1')
    for t in range(6):
        r = W2 + 4 * t
        if t < 5:
            g(f'v_add_u32 v{r + 4}, s39, v{r}')
        if t == 5 and o['w2skip']:
            g(f'''
            s_cmp_eq_u32 s37, 5
            s_cselect_b64 exec, 1, -1
            s_cselect_b32 s39, s39, 0
            v_subrev_u32 v{r}, s39, v{r}
            global_load_dwordx4 v[{r}:{r + 3}], v{r}, s[24:25] {WNT}
            s_mov_b64 exec, -1
            ''')
        else:
            g(f'global_load_dwordx4 v[{r}:{r + 3}], v{r}, s[24:25] {WNT}')
    if o['ytouch'] >= 4:
        nl = {4: 4, 5: 8, 6: 16, 7: 24}[o['ytouch']]
        g(f'''
        s_lshl_b32 s7, s5, 5
        s_add_u32 s7, s7, s4
        s_lshl_b32 s7, s7, 9
        s_add_u32 s7, s7, {WS_Y}
        v_lshl_add_u32 v15, v1, 7, s7
        ''')
        if nl > 4:
            g(f'''
            s_mov_b64 exec, 0xf0
            v_add_u32 v15, {WS_B - WS_Y - 512}, v15
            ''')
        if nl > 8:
            g(f'''
            s_lshl_b32 s7, s2, 10
            s_add_u32 s7, s7, {WS_Q - 1024}
            s_mov_b64 exec, 0xff00
            v_lshl_add_u32 v15, v1, 7, s7
            ''')
        if nl > 16:
            g(f'''
            s_lshl_b32 s7, s4, 3
            s_add_u32 s7, s7, s5
            s_lshl_b32 s7, s7, 10
            s_add_u32 s7, s7, {WS_O - 2048}
            s_mov_b64 exec, 0xff0000
            v_lshl_add_u32 v15, v1, 7, s7
            ''')
        g(f'''
        s_mov_b64 exec, {hex((1 << nl) - 1)}
        global_load_dword v15, v15, s[32:33]
        s_mov_b64 exec, -1
        ''')
    if o['sbpos'] == 'issue' or o['pure'] == 1:
        g('s_barrier')
    g.stamp(2)
    if o['pure'] == 1:
        g('s_waitcnt vmcnt(0)')
        for i in range(3, 10): g.stamp(i)
        g('s_getreg_b32 s80, hwreg(HW_REG_HW_ID)')
        g.stamp_out(11, '0')
        g('s_endpgm')
    masks(g, M4, M8, 'v13', 'v14')
    g(f'''
    s_lshl_b32 s7, s58, 13
    s_lshl_b32 s35, s59, 10
    s_add_u32 s35, s35, s7
    s_add_u32 s35, s35, {WS_Q}
    v_add_u32 v200, s35, v10
    s_lshl_b32 s7, s4, 6
    s_add_u32 s7, s7, {WS_X}
    v_and_b32 v13, 7, v1
    v_lshl_add_u32 v206, v13, 3, s7
    s_lshl3_add_u32 s7, s5, s7
    v_mov_b32 v207, s7
    s_lshl_b32 s7, s4, 13
    s_add_u32 s7, s7, {WS_Q + 4096}
    v_add_u32 v201, s7, v10
    v_add_u32 v202, {hex(WS_Z - WS_Q)}, v201
    v_add_u32 v205, {hex(WS_Z - WS_Q)}, v200
    s_lshl_b32 s7, s5, 5
    s_add_u32 s7, s7, s4
    s_lshl_b32 s7, s7, 9
    s_add_u32 s7, s7, {WS_B}
    v_and_b32 v13, 1, v3
    v_lshlrev_b32 v13, 5, v13
    v_lshl_or_b32 v13, v2, 6, v13
    v_lshrrev_b32 v14, 1, v3
    v_lshl_or_b32 v13, v14, 3, v13
    v_add_u32 v204, s7, v13
    v_and_b32 v13, 3, v1
    v_lshlrev_b32 v13, 2, v13
    v_mov_b32 v14, 0
    ds_write_b32 v13, v14 offset:{L_ZERO}
    s_mov_b32 s40, {SPIN}
    s_getreg_b32 s39, hwreg(HW_REG_XCC_ID, 0, 4)
    s_waitcnt vmcnt({39 + YT})
    ''')
    g.stamp(3)
    for i in range(4):
        g(f'v_lshlrev_b32 {E[2 * i]}, 16, v{4 + i}')
        g(f'v_and_b32 {E[2 * i + 1]}, 0xffff0000, v{4 + i}')
    g('v_lshlrev_b32 v8, 16, v8')

    def normalise_own():
        layernorm_stats(g, E, 'v4', 'v5', 's35', 'v6', 'v7')
        g('v_sub_f32 v8, v8, v6')
        bf_round(g, 'v8', 'v8')
        g('v_mul_f32 v8, v8, v7')
        g('v_cvt_pk_bf16_f32 v8, v8, v8')
        g('s_nop 1')

    def gemv16(src, base, acc, vm0, bar=None):
        for t in range(17):
            if t < 16:
                for j in range(4):
                    g(f'v_and_b32_dpp v{AS[t % 2] + j}, {src}, v{M4 + j} row_newbcast:{t} {DPPF}')
            else:
                g('s_nop 1')
            if t >= 1:
                k = t - 1
                if k % 4 == 0 and k < 12:
                    g(f's_waitcnt vmcnt({vm0 - (k + 3)})')
                elif k >= 12:
                    g(f's_waitcnt vmcnt({vm0 - k})')
                if k == bar:
                    g('s_barrier')
                g(mfma(acc, AS[k % 2], base + 4 * k, k == 0))
    if o['sbpos'] == 'x':
        g('s_barrier')
    g('; xn = layernorm(x); partial q = xn[64 rows] . wq[64 rows, 128 columns]')
    normalise_own()
    gemv16('v8', WQ, QA, 38 + YT, o['sbpos'] if isinstance(o['sbpos'], int) else None)
    for i in range(8):
        g(f'v_sub_f32 {E[i]}, {E[i]}, v6')
    if not o['mergez']:
        g(f'''
        s_waitcnt lgkmcnt(0)
        s_add_u32 s34, s34, 0x01010101
        v_mov_b32 v{QA + 2}, s34
        v_mov_b32 v{QA + 3}, s39
        {'global_load_dword v14, v10, s[8:9]' if 's' in o['skip'] else f'global_store_dwordx4 v200, v[{QA}:{QA + 3}], s[32:33] sc1'}
        ''')
    g.stamp(4)
    g('; y = layernorm(xn); partial z = y[64 rows] . w1[64 rows, 48 columns]')
    for i in range(8):
        bf_round(g, E[i], E[i])
    for i in range(8):
        g(f'v_mul_f32 {E[i]}, {E[i]}, v7')
    for i in range(8):
        bf_round(g, E[i], E[i])
    g('v_and_b32 v8, 0xffff0000, v8')
    normalise_own()
    gemv16('v8', W1, ZA, YT + (22 if o['mergez'] else 23))
    if o['mergez']:
        g(f'''
        s_waitcnt lgkmcnt(0)
        s_add_u32 s34, s34, 0x01010101
        v_mov_b32 v{QA + 3}, s39
        v_mov_b32 v{QA + 2}, s34
        s_mov_b32 s56, 0x3f3f3f3f
        s_mov_b32 s57, s56
        s_nop 1
        v_mov_b32_dpp v{ZA}, v{ZA + 1} row_ror:8 row_mask:0xf bank_mask:0xc
        v_cndmask_b32 v{QA + 3}, v{QA + 3}, v{ZA}, s[56:57]
        {'' if 's' in o['skip'] else f'global_store_dwordx4 v200, v[{QA}:{QA + 3}], s[32:33] sc1'}
        ''')
        if o['qlin']:
            g(f'''
            v_mov_b32 v12, s39
            v_mov_b32 v13, s34
            s_mov_b64 exec, 1
            global_store_dwordx2 v207, v[12:13], s[32:33] sc1
            s_mov_b64 exec, -1
            ''')
    else:
        g(f'''
        s_nop 7
        v_mov_b32 v{ZA + 2}, s34
        v_mov_b32 v{ZA + 3}, s34
        s_mov_b64 exec, s[54:55]
        {'' if 's' in o['skip'] else f'global_store_dwordx4 v205, v[{ZA}:{ZA + 3}], s[32:33] sc1'}
        ''')
    if o['prew'] == 2:
        g(f'''
        s_lshl_b32 s7, s4, 3
        s_add_u32 s7, s7, s5
        s_lshl_b32 s7, s7, 10
        s_add_u32 s7, s7, {WS_O}
        v_and_b32 v14, 7, v1
        v_lshl_add_u32 v14, v14, 7, s7
        global_load_dword v14, v14, s[32:33]
        ''')
    if o['prew'] == 1:
        g(f'''
        ''')
        if o['ogm']:
            g(f'''
            s_lshl_b32 s7, s4, 13
            s_add_u32 s7, s7, {WS_O}
            s_lshl4_add_u32 s7, s5, s7
            v_lshl_add_u32 v14, v1, 7, s7
            ''')
        else:
            g(f'''
        s_lshl_b32 s7, s4, 3
        s_add_u32 s7, s7, s5
        s_lshl_b32 s7, s7, 10
        s_add_u32 s7, s7, {WS_O}
        v_add_u32 v14, s7, v10
            ''')
        g(f'''
        v_not_b32 v{ZA + 2}, v{QA + 2}
        global_store_dwordx4 v14, v[{ZA}:{ZA + 3}], s[32:33]
        ''')
    g.stamp(5)
    g('s_barrier')
    g.stamp(6)
    ZP = 48; QP = 16

    def polls(base, addr, n):
        if 'p' in o['skip']: return
        for p in range(8):
            g(f'global_load_dwordx{n} v[{base + 4 * p}:{base + 4 * p + n - 1}], {addr}, s[32:33] offset:{1024 * p - 4096} sc1')

    def alleq(base, word, sreg):
        for p in range(4):
            g(f'v_bitop3_b32 v{10 + p}, v{base + 8 * p + word}, v{base + 8 * p + 4 + word}, {sreg} bitop3:0x7e')
        g('v_or3_b32 v10, v10, v11, v12')
        g('v_or_b32 v10, v10, v13')

    def sum8(base):
        for st in (1, 2, 4):
            for p in range(0, 8, 2 * st):
                a = base + 4 * p; b = base + 4 * (p + st)
                g(f'v_pk_add_f32 v[{a}:{a + 1}], v[{a}:{a + 1}], v[{b}:{b + 1}]')
    if o['ytouch'] and o['ytaux']:
        g(f'''
        s_lshr_b32 s35, s4, 2
        s_cmp_eq_u32 s35, s5
        s_cbranch_scc0 L_pollq
        s_lshl_b32 s35, s5, 14
        s_and_b32 s7, s4, 3
        s_lshl_b32 s7, s7, 7
        s_add_u32 s35, s35, s7
        s_add_u32 s35, s35, {WS_Y}
        v_and_b32 v14, 31, v1
        v_lshl_add_u32 v14, v14, 9, s35
        global_load_dword v14, v14, s[32:33]
        ''')
    g('; B0 passed: gather the eight partials of this head (tag-checked), q = bf16(sum) -> LDS')
    g('L_pollq:')
    if not o['mergez']:
        g('s_mov_b64 exec, s[54:55]')
        polls(ZP, 'v202', 3)
        g('s_mov_b64 exec, -1')
    polls(QP, 'v201', 4)
    if o['qlin'] and 'p' not in o['skip']:
        g('global_load_dwordx2 v[48:49], v206, s[32:33] sc1')
    g('''
    s_sub_u32 s40, s40, 1
    s_cbranch_scc1 L_end
    s_waitcnt vmcnt(0)
    L_warm3:
    ''')
    alleq(QP, 2, 's34')
    if o['qlin']:
        g('v_xor_b32 v11, s34, v49')
        g('v_or_b32 v10, v10, v11')
    g('v_cmp_ne_u32 vcc, 0, v10')
    if 'p' not in o['skip']: g('s_cbranch_vccnz L_pollq')
    sum8(QP)
    g(f'''
    v_cvt_pk_bf16_f32 v{QP}, v{QP}, v{QP + 1}
    ds_write_b32 v203, v{QP} offset:{L_Q}
    ''')
    if o['qlin']:
        g('''
        v_cmp_ne_u32 vcc, s39, v48
        s_cmp_lg_u64 vcc, 0
        s_cselect_b32 s35, 1, 0
        v_mov_b32 v10, s35
        ''')
    else:
        alleq(QP, 3, 's39')
    if o['mergez'] and not o['qlin']:
        g('s_nop 1')
        g(f'v_mov_b32_dpp v10, v10 row_newbcast:15 {DPPF}')
    if o['diag']:
        g(f's_sub_u32 s80, {SPIN}, s40')
    g(f'''
    v_mov_b32 v11, 0
    ds_write_b32 v11, v10 offset:{L_FLAG}
    {'s_cbranch_execz L_chkz' if WARM else ''}
    s_waitcnt lgkmcnt(0)
    ''')
    g.stamp(7)
    if o['pure'] == 2:
        for i in range(8, 10): g.stamp(i)
        g.stamp_out(11, '0')
        g('s_endpgm')
    g('''
    s_barrier
    s_barrier
    L_chkz:
    ''')
    g('; h = gelu(bf16(bf16(sum z) + b1)); partial MLP output = h[40|48 rows] . w2[rows, 64 columns]')
    k0 = hex(f2u(0.044715)); k1 = hex(f2u(-2.0 * 0.7978845608028654 * LOG2E))
    if o['mergez']:
        if not o.get('st8'): g.stamp(8)
        for st in (1, 2, 4):
            for p in range(0, 8, 2 * st):
                g(f'v_add_f32 v{QP + 4 * p + 3}, v{QP + 4 * p + 3}, v{QP + 4 * (p + st) + 3}')
        z = f'v{QP + 3}'
        bf_round(g, z, z)
        g(f'''
        v_lshlrev_b32 v9, 16, v9
        v_add_f32 {z}, {z}, v9
        ''')
        bf_round(g, z, z)
        g(f'''
        v_mul_f32 v10, {z}, {z}
        v_mul_f32 v10, v10, {z}
        v_fmamk_f32 v10, v10, {k0}, {z}
        v_mul_f32 v10, {k1}, v10
        v_exp_f32 v10, v10
        s_nop 0
        v_add_f32 v10, 1.0, v10
        v_rcp_f32 v10, v10
        s_nop 0
        v_mul_f32 v10, v10, {z}
        v_cvt_pk_bf16_f32 v10, v10, v10
        s_nop 1
        ''')
    else:
        alleq(ZP, 2, 's34')
        g('''
        v_cmp_ne_u32 vcc, 0, v10
        s_and_b64 vcc, vcc, s[54:55]
        ''')
        if 'p' not in o['skip']: g('s_cbranch_vccnz L_retryz')
        g.stamp(8)
        sum8(ZP)
        z0, z1 = f'v{ZP}', f'v{ZP + 1}'
        k0 = hex(f2u(0.044715)); k1 = hex(f2u(-2.0 * 0.7978845608028654 * LOG2E))
        g(f'''
        v_cvt_pk_bf16_f32 {z0}, {z0}, {z1}
        v_lshlrev_b32 v10, 16, v9
        v_and_b32 v11, 0xffff0000, v9
        v_and_b32 {z1}, 0xffff0000, {z0}
        v_lshlrev_b32 {z0}, 16, {z0}
        v_add_f32 {z0}, {z0}, v10
        v_add_f32 {z1}, {z1}, v11
        v_cvt_pk_bf16_f32 {z0}, {z0}, {z1}
        v_and_b32 {z1}, 0xffff0000, {z0}
        v_lshlrev_b32 {z0}, 16, {z0}
        v_mul_f32 v10, {z0}, {z0}
        v_mul_f32 v11, {z1}, {z1}
        v_mul_f32 v10, v10, {z0}
        v_mul_f32 v11, v11, {z1}
        v_fmamk_f32 v10, v10, {k0}, {z0}
        v_fmamk_f32 v11, v11, {k0}, {z1}
        v_mul_f32 v10, {k1}, v10
        v_mul_f32 v11, {k1}, v11
        v_exp_f32 v10, v10
        v_exp_f32 v11, v11
        s_nop 0
        v_add_f32 v10, 1.0, v10
        v_add_f32 v11, 1.0, v11
        v_rcp_f32 v10, v10
        v_rcp_f32 v11, v11
        s_nop 0
        v_mul_f32 v10, v10, {z0}
        v_mul_f32 v11, v11, {z1}
        v_cvt_pk_bf16_f32 v10, v10, v10
        v_cvt_pk_bf16_f32 v11, v11, v11
        s_nop 1
        ''')
    BA = 184
    for jj in range(6):
        if jj == 5:
            g('s_cmp_eq_u32 s37, 5')
            g('s_cbranch_scc1 L_five')
        a = AS[jj % 2]
        g(f'v_mov_b32_dpp v12, v10 row_newbcast:{jj} row_mask:0xf bank_mask:0x3')
        if o['mergez']:
            g(f'v_mov_b32_dpp v12, v10 row_newbcast:{jj + 8} row_mask:0xf bank_mask:0xc')
        else:
            g(f'v_mov_b32_dpp v12, v11 row_newbcast:{jj} row_mask:0xf bank_mask:0xc')
        for j in range(4):
            g(f'v_and_b32 v{a + j}, v12, v{M8 + j}')
        g('s_nop 1')
        g(mfma(BA, a, W2 + 4 * jj, jj == 0))
    g(f'''
    L_five:
    s_nop 7
    v_permlane32_swap_b32 v{BA}, v{BA + 1}
    v_permlane32_swap_b32 v{BA + 2}, v{BA + 3}
    v_mov_b32 v11, s34
    v_mov_b32 v13, s34
    v_add_f32_dpp v10, v{BA + 1}, v{BA} row_ror:8 {DPPF}
    v_add_f32_dpp v12, v{BA + 3}, v{BA + 2} row_ror:8 {DPPF}
    {'s_cbranch_execz L_wend' if WARM else ''}
    s_mov_b32 exec_lo, 0x00ff00ff
    s_mov_b32 exec_hi, 0x00ff00ff
    global_store_dwordx2 v204, v[10:11], s[32:33] sc1
    global_store_dwordx2 v204, v[12:13], s[32:33] offset:16 sc1
    ''')
    g.stamp(9)
    g('s_barrier')
    if o['b3b']:
        g('s_barrier')
    g('s_barrier')
    g.stamp_out(11, '0')
    g('s_endpgm')
    if not o['mergez']:
        g('''
        L_retryz:
        s_sub_u32 s40, s40, 1
        s_cbranch_scc1 L_end
        s_mov_b64 exec, s[54:55]
        ''')
        polls(ZP, 'v202', 3)
        g('''
        s_mov_b64 exec, -1
        s_waitcnt vmcnt(0)
        s_branch L_chkz
        ''')
    if WARM:
        g('L_wend:')
        if o.get('wdiag'):
            g.stamp(1)
            g.stamp_out(2, '5')
        g('s_endpgm')


def gen(opt):
    o = dict(DEFAULTS); o.update(opt)
    if o['pure']:
        o['warm'] = min(o['warm'], 1)
    g = G(o)
    g.stamp(0)
    g('''
    s_load_dwordx16 s[8:23], s[0:1], 0
    ''')
    if not o['ksplit']:
        g('s_load_dwordx8 s[24:31], s[0:1], 64\ns_load_dwordx2 s[32:33], s[0:1], 96')
    g('''
    v_readfirstlane_b32 s3, v0
    s_cmp_ge_u32 s2, 256
    s_cbranch_scc1 L_end
    ''')
    if o['lin']:
        g('s_lshr_b32 s4, s2, 3\ns_and_b32 s5, s2, 7')
    else:
        g('s_and_b32 s4, s2, 31\ns_lshr_b32 s5, s2, 5')
    if o.get('latp'):
        sp, off = o['latp']
        g(f'''
        s_waitcnt lgkmcnt(0)
        s_cmp_eq_u32 s2, 0
        s_cselect_b32 s35, s3, 0
        s_cmp_eq_u32 s35, 320
        s_cbranch_scc0 L_lp1
        s_mov_b64 exec, 1
        v_mov_b32 v2, {off + 0x1000}
        global_load_dword v3, v2, {sp} nt
        s_waitcnt vmcnt(0)
        s_mov_b32 s39, 0
        ''')
        for i in range(4):
            g(f'''
            v_mov_b32 v2, {off + 0x2000 * i + 0x200}
            s_memtime s[44:45]
            s_waitcnt lgkmcnt(0)
            global_load_dword v3, v2, {sp} nt
            s_waitcnt vmcnt(0)
            s_memtime s[46:47]
            s_waitcnt lgkmcnt(0)
            s_sub_u32 s46, s46, s44
            s_add_u32 s39, s39, s46
            ''')
        g(f'''
        s_lshr_b32 s39, s39, 3
        v_mov_b32 v2, {WS_ST + 0x100000}
        v_mov_b32 v3, s39
        global_store_dword v2, v3, s[32:33] sc1
        s_mov_b64 exec, -1
        L_lp1:
        s_memrealtime s[44:45]
        s_waitcnt lgkmcnt(0)
        s_sub_u32 s44, s44, s60
        s_cmp_lt_u32 s44, 400
        s_cbranch_scc1 L_lp1
        ''')
    if o['five']:
        o['warm'] = 0
        g('''
        v_and_b32 v1, 63, v0
        s_cmp_lt_u32 s3, 64
        s_cbranch_scc0 L_stream
        s_getpc_b64 s[36:37]
        L_pc:
        s_bfe_u32 s35, s2, 0x30003
        s_mul_i32 s35, s35, 1280
        v_lshl_add_u32 v15, v1, 7, s35
        v_min_u32 v15, L_codeend-L_pc-4, v15
        s_mov_b64 exec, 0x3ff
        global_load_dword v247, v15, s[36:37]
        s_mov_b64 exec, -1
        ''')
    else:
        g('''
        v_and_b32 v1, 63, v0
        s_cmp_lt_u32 s3, 64
        s_cbranch_scc1 L_aux
        s_cmp_lt_u32 s3, 320
        s_cbranch_scc1 L_stream
        ''')
    if o['five']:
        pass
    elif o['cpfsplit']:
        g('''
        s_getpc_b64 s[36:37]
        L_pc:
        s_bfe_u32 s35, s2, 0x30003
        s_mul_i32 s35, s35, 1280
        v_lshl_add_u32 v2, v1, 7, s35
        v_min_u32 v2, L_codeend-L_pc-4, v2
        s_mov_b64 exec, 0x3ff
        global_load_dword v2, v2, s[36:37]
        s_barrier
        ''')
    else:
        g('''
        s_getpc_b64 s[36:37]
        L_pc:
        v_lshlrev_b32 v2, 7, v1
        v_add_u32 v3, 0x2000, v2
        v_min_u32 v2, L_codeend-L_pc-4, v2
        v_min_u32 v3, L_codeend-L_pc-4, v3
        global_load_dword v2, v2, s[36:37]
        global_load_dword v3, v3, s[36:37]
        s_barrier
        ''')
    if o['warm'] and not o['pure']:
        g(f'''
        {'s_load_dwordx8 s[24:31], s[0:1], 64' if o['ksplit'] else ''}
        {'s_load_dwordx2 s[32:33], s[0:1], 96' if o['ksplit'] else ''}
        s_mov_b32 s6, 0
        s_mov_b64 s[54:55], 0
        s_waitcnt vmcnt(0) lgkmcnt(0)
        s_mov_b64 exec, 0
        s_branch L_warm1
        ''')
    elif not o['five']:
        g('s_endpgm')
    pro = g.take()
    gen_aux(g, o)
    aux = g.take()
    gen_stream(g, o)
    strm = g.take()
    if o['align']:
        strm = [f'.p2align {o["align"]}'] + strm
        aux = ([f'.p2align {o["align"]}'] if not o['five'] else []) + aux
    body = pro + aux + strm + ['L_codeend:']
    head = open('recurrent_scan__sliding_block_cached__mixer_channel_mlp__decode.s.ref').read().split('; Override launch')[0]
    return head + f'''; Single fused launch, one workgroup (6 waves) per CU: workgroup b = (head h = b & 31, key split s = b >> 5).
;   wave 0     layernorms, a 64-row slab of x@wq and of y@w1 (slab/head index from b in linear order), q gather, MLP layer 2
;   waves 1-4  stream 256 keys of K and V, exact softmax partials, then 128 x 64 of wo; 32 of them finish 16 outputs each
;   wave 5     pulls the code into L2 and walks the late code with EXEC = 0 (branching round every memory op and barrier)
; Row-major weights are multiplied without a transpose: the A fragment holds one multiplier per lane in one half-word.
; Hand-offs go through d_ws as 16- or 8-byte granules that carry a tag = (word 0 of d_ws at entry) + 0x01010101;
; the last reducer step stores the tag back to word 0.  All hand-offs are write-through (sc1) except the o partials,
; which use plain stores only when the eight workgroups of the head have reported the same XCC id in this launch.
; Every spin is bounded.  Intermediates are rounded to bf16 where the reference rounds them.
; @launch grid=(256,1,1) block=({320 if o['five'] else 384},1,1) lds={LDS_BYTES}
.amdgcn_target "amdgcn-amd-amdhsa--gfx950"
.text
.globl {KN}
.p2align 8
.type {KN},@function
{KN}:
''' + '\n'.join(body) + f'''
.section .rodata,"a"
.p2align 6
.amdhsa_kernel {KN}
  .amdhsa_next_free_vgpr {248 if (o['yv'] == 2 or o['five']) else 244}
  .amdhsa_next_free_sgpr {96 if o['diag'] else 64}
  .amdhsa_accum_offset {248 if (o['yv'] == 2 or o['five']) else 244}
  .amdhsa_group_segment_fixed_size 0
  .amdhsa_kernarg_size 104
  .amdhsa_user_sgpr_count 2
  .amdhsa_user_sgpr_kernarg_segment_ptr 1
  .amdhsa_system_sgpr_workgroup_id_x 1
  .amdhsa_float_denorm_mode_32 3
.end_amdhsa_kernel
'''


if __name__ == '__main__':
    out = sys.argv[1]
    opt = eval(sys.argv[2]) if len(sys.argv) > 2 else {}
    open(out, 'w').write(gen(opt))
```

```python
import sys, struct

KN = 'recurrent_scan__sliding_block_cached__mixer_channel_mlp__decode_kernel'

def f2u(x):
    return struct.unpack('<I', struct.pack('<f', x))[0]

LOG2E = 1.4426950408889634
WS_Q = 0x10000
WS_Z = 0x60000
WS_O = 0xB0000
WS_Y = 0x100000
WS_B = 0x140000
WS_X = 0x8000
WS_ST = 0x200000
L_Q = 0; L_ZERO = 256; L_MAX = 272; L_SUM = 288; L_FLAG = 304; L_O = 512; L_Y = 2560; LDS_BYTES = 8192
DPPF = 'row_mask:0xf bank_mask:0xf'
SPIN = 100000

DEFAULTS = dict(diag=0, nt=1, wnt=1, warm=1, loc=1, b0=4, b1=3, sched=(5, 5, 0, 1), thr2=12, sp=(2, 2, 3), gap=1, b3b=1,
                pure=0, h1p=0, oclean=0, bits=None, rs='s1', slot3=None, ostf='', align=0, ksplit=0, five=0, blate=1, ogm=1, par=None, cpfsplit=1, ytaux=0, w2skip=1, yv=3, sbpos='issue', prew=0, kvmap=3, qlin=1, mergez=1, shrink=1, sleep1=0, skip='', ytouch=4, probe=None, lin=0, outf='', map=0, spthr=0)


class G:
    def __init__(self, opt):
        self.L = []
        self.o = opt

    def __call__(self, s):
        for line in s.strip('\n').split('\n'):
            line = line.strip()
            if not line:
                continue
            self.L.append(line if (line.endswith(':') and not line.startswith(';')) else '    ' + line)

    def take(self):
        L, self.L = self.L, []
        return L

    def stamp(self, i):
        if self.o['diag']:
            self(f's_memrealtime s[{60 + 2 * i}:{61 + 2 * i}]')

    def stamp_out(self, n, wave):
        if not self.o['diag']:
            return
        self(f'''
        s_waitcnt lgkmcnt(0)
        s_lshl_b32 s41, s2, 3
        s_add_u32 s41, s41, {wave}
        s_lshl_b32 s41, s41, 7
        s_add_u32 s41, s41, {WS_ST}
        s_mov_b64 exec, 0xffff
        v_lshl_add_u32 v2, v1, 2, s41
        ''')
        for i in range(n):
            self(f'v_writelane_b32 v3, s{60 + 2 * i}, {i}')
        self('global_store_dword v2, v3, s[32:33]')


def wave_sum(g, regs, op='v_add_f32'):
    pad = max(0, 2 - (len(regs) - 1))
    for ctl in ('row_ror:1 ' + DPPF, 'row_ror:2 ' + DPPF, 'row_ror:4 ' + DPPF, 'row_ror:8 ' + DPPF,
                'row_bcast:15 row_mask:0xa bank_mask:0xf', 'row_bcast:31 row_mask:0xc bank_mask:0xf'):
        if pad:
            g(f's_nop {pad - 1}')
        for r in regs:
            g(f'{op}_dpp {r}, {r}, {r} {ctl}')


def bf_round(g, dst, src):
    g(f'v_cvt_pk_bf16_f32 {dst}, {src}, {src}')
    g(f'v_and_b32 {dst}, 0xffff0000, {dst}')


def layernorm_stats(g, e, t0, t1, smean, vmeanb, vrinv):
    g(f'''
    v_add_f32 {t0}, {e[0]}, {e[1]}
    v_add_f32 {t1}, {e[2]}, {e[3]}
    v_add_f32 {t0}, {t0}, {e[4]}
    v_add_f32 {t1}, {t1}, {e[5]}
    v_add_f32 {t0}, {t0}, {e[6]}
    v_add_f32 {t1}, {t1}, {e[7]}
    v_add_f32 {t0}, {t0}, {t1}
    ''')
    wave_sum(g, [t0])
    g(f'''
    v_mul_f32 {t0}, {hex(f2u(1.0 / 512))}, {t0}
    s_nop 0
    v_readlane_b32 {smean}, {t0}, 63
    s_nop 1
    v_subrev_f32 {t0}, {smean}, {e[0]}
    v_subrev_f32 {vmeanb}, {smean}, {e[1]}
    v_mul_f32 {t0}, {t0}, {t0}
    v_mul_f32 {t1}, {vmeanb}, {vmeanb}
    ''')
    for i in range(2, 8, 2):
        g(f'''
        v_subrev_f32 {vrinv}, {smean}, {e[i]}
        v_subrev_f32 {vmeanb}, {smean}, {e[i + 1]}
        v_fmac_f32 {t0}, {vrinv}, {vrinv}
        v_fmac_f32 {t1}, {vmeanb}, {vmeanb}
        ''')
    g(f'v_add_f32 {t0}, {t0}, {t1}')
    g(f'v_mov_b32 {vmeanb}, {smean}')
    wave_sum(g, [t0])
    g(f'v_mul_f32 {t0}, {hex(f2u(1.0 / 512))}, {t0}')
    bf_round(g, vmeanb, vmeanb)
    g(f'v_readlane_b32 {smean}, {t0}, 63')
    g('s_nop 1')
    g(f'v_mov_b32 {t0}, {smean}')
    bf_round(g, t0, t0)
    g(f'v_add_f32 {t0}, {hex(f2u(1e-5))}, {t0}')
    bf_round(g, t0, t0)
    g(f'v_sqrt_f32 {t0}, {t0}')
    g('s_nop 0')
    bf_round(g, t0, t0)
    g(f'v_rcp_f32 {vrinv}, {t0}')
    g('s_nop 0')


def masks(g, M4, M8, t0, t1):
    g(f'''
    v_and_b32 {t0}, 1, v1
    v_lshlrev_b32 {t0}, 4, {t0}
    v_mov_b32 {t1}, 0xffff
    v_lshlrev_b32 {t0}, {t0}, {t1}
    v_bfe_u32 {t1}, v1, 1, 2
    ''')
    for j in range(4):
        g(f'v_cmp_eq_u32 s[{44 + 2 * j}:{45 + 2 * j}], {j}, {t1}')
        g(f'v_mov_b32 v{M4 + j}, 0')
    for j in range(4):
        g(f'v_mov_b32_dpp v{M4 + j}, {t0} quad_perm:[0,1,2,3] row_mask:0xf bank_mask:{hex(1 << j)}')
        g(f'v_cndmask_b32 v{M8 + j}, 0, {t0}, s[{44 + 2 * j}:{45 + 2 * j}]')


def mfma(d, a, b, first):
    c = '0' if first else f'v[{d}:{d + 3}]'
    return f'v_mfma_f32_16x16x32_bf16 v[{d}:{d + 3}], v[{a}:{a + 3}], v[{b}:{b + 3}], {c}'


M4 = 192; M8 = 196


def gen_stream(g, o):
    NT = o['nt'] if isinstance(o['nt'], str) else ('nt' if o['nt'] else '')
    WNT = o['wnt'] if isinstance(o['wnt'], str) else ('nt' if o['wnt'] else '')
    WARM = o['warm']
    KR = 16; VR = 80; WO = 144; QB = 160; DT = 176; OA = 220; YA = 224
    nskip = [0]

    def wskip():
        if not WARM:
            return ''
        nskip[0] += 1
        g(f's_cbranch_execz L_ws{nskip[0]}')
        return f'L_ws{nskip[0]}:'
    g(f'''
    L_stream:
    ''')
    if o['ksplit']:
        g('s_load_dwordx8 s[24:31], s[0:1], 64\ns_load_dwordx2 s[32:33], s[0:1], 96')
    KV = o['kvmap']
    TPOS = None
    if o['bits']:
        KV = 9
        pos, xr = o['bits']
        TPOS = pos[5:7]
        g('''
        s_lshr_b32 s6, s3, 6
        s_sub_u32 s6, s6, 1
        s_lshl_b32 s7, s4, 21
        s_add_u32 s7, s7, 0x180000
        ''')
        src = {'w0': ('s6', 0), 'w1': ('s6', 1), 's0': ('s5', 0), 's1': ('s5', 1), 's2': ('s5', 2), 'j0': ('s4', 3), 'j1': ('s4', 4), 'x0': ('s4', 0), 'x1': ('s4', 1), 'x2': ('s4', 2)}
        for nm, p in list(zip(('w0', 'w1', 's0', 's1', 's2'), pos[:5])) + list(xr):
            r, b = src[nm]
            g(f's_bfe_u32 s35, {r}, {hex(0x10000 | b)}\ns_lshl_b32 s35, s35, {p}\ns_xor_b32 s7, s7, s35')
    elif KV == 0:
        TSH = 12
        g('''
        s_lshl_b32 s7, s4, 21
        s_lshl_b32 s35, s5, 16
        s_add_u32 s7, s7, s35
        s_lshl_b32 s35, s3, 8
        s_add_u32 s7, s7, s35
        s_and_b32 s35, s2, 24
        s_lshl_b32 s35, s35, 9
        s_add_u32 s7, s7, s35
        s_add_u32 s7, s7, 0x17c000
        ''')
    elif KV in (1, 2):
        TSH = 17
        g('''
        s_lshl_b32 s7, s4, 21
        s_lshl_b32 s35, s5, 14
        s_add_u32 s7, s7, s35
        s_lshl_b32 s35, s3, 6
        s_add_u32 s7, s7, s35
        s_add_u32 s7, s7, 0x17f000
        ''')
        if KV == 2:
            g('s_and_b32 s35, s2, 24\ns_lshl_b32 s35, s35, 14\ns_add_u32 s7, s7, s35')
    elif KV in (3, 5):
        TSH = 14
        g(f'''
        s_lshl_b32 s7, s4, 21
        s_lshl_b32 s35, s5, 16
        s_add_u32 s7, s7, s35
        s_lshl_b32 s35, s3, {6 if KV == 3 else 4}
        s_add_u32 s7, s7, s35
        s_add_u32 s7, s7, {hex(0x17f000 if KV == 3 else 0x180000 - 0x400 + 0x1000)}
        ''')
        rs = o['rs']
        if rs == 'j':
            g('s_and_b32 s35, s2, 24\ns_lshl_b32 s35, s35, 11')
        elif rs == 's':
            g('s_and_b32 s35, s5, 3\ns_lshl_b32 s35, s35, 14')
        elif rs == 'js':
            g('s_lshr_b32 s35, s2, 3\ns_xor_b32 s35, s35, s5\ns_and_b32 s35, s35, 3\ns_lshl_b32 s35, s35, 14')
        elif rs == 'x':
            g('s_and_b32 s35, s2, 3\ns_lshl_b32 s35, s35, 14')
        elif rs == 'j1':
            g('s_and_b32 s35, s2, 8\ns_lshl_b32 s35, s35, 11')
        elif rs == 's1':
            g('s_and_b32 s35, s5, 1\ns_lshl_b32 s35, s35, 14')
        if rs != 'n':
            g('s_add_u32 s7, s7, s35')
    g(f'''
    v_lshlrev_b32 v2, 4, v1
    v_and_b32 v3, 0x30, v2
    v_and_b32 v4, 0xc0, v2
    v_lshl_or_b32 v3, v4, 2, v3
    v_lshrrev_b32 v4, 4, v1
    v_lshl_or_b32 v3, v4, 6, v3
    v_add_u32 v{KR + 12}, s7, v3
    v_add_u32 v{VR + 12}, s7, v2
    ''')
    for T in range(1, 4):
        g(f'v_xor_b32 v{KR + 16 * T + 12}, {hex(T << TSH if TPOS is None else ((T & 1) << TPOS[0]) | ((T >> 1) << TPOS[1]))}, v{KR + 12}')
    for T in range(1, 4):
        g(f'v_xor_b32 v{VR + 16 * T + 12}, {hex(T << TSH if TPOS is None else ((T & 1) << TPOS[0]) | ((T >> 1) << TPOS[1]))}, v{VR + 12}')
    if KV == 5:
        for base in (KR, VR):
            for T in range(4):
                g(f'v_mov_b32 v{base + 16 * T + 4}, v{base + 16 * T + 12}')
                g(f'v_add_u32 v{base + 16 * T + 12}, 0x2000, v{base + 16 * T + 12}')
    g(f'''
    s_lshr_b32 s6, s3, 6
    s_sub_u32 s6, s6, 1
    s_and_b32 s35, s4, 3
    s_lshl_b32 s35, s35, 5
    s_lshl_b32 s37, s5, 7
    s_add_u32 s35, s35, s37
    v_and_b32 v5, 7, v1
    v_and_b32 v6, 1, v4
    v_lshlrev_b32 v6, 1, v6
    v_lshl_or_b32 v6, v5, 2, v6
    v_add_u32 v204, s35, v6
    v_lshrrev_b32 v9, 3, v1
    s_lshl_b32 s35, s5, 14
    s_and_b32 s38, s4, 3
    s_lshl_b32 s38, s38, 7
    s_add_u32 s35, s35, s38
    s_add_u32 s35, s35, {WS_B + 4096}
    v_lshlrev_b32 v8, 9, v9
    v_lshl_or_b32 v8, v5, 4, v8
    v_add_u32 v211, s35, v8
    v_add_u32 v212, 0x2000, v211
    v_add_u32 v218, {hex((WS_Y - WS_B) & 0xffffffff)}, v211
    v_add_u32 v219, 0x2000, v218
    {'v_add_u32 v245, 0x22000, v218' if o['yv'] == 2 else ''}
    {'v_add_u32 v246, 0x20000, v218' if o['yv'] == 2 else ''}
    ; s53 = 1 : this wave is a final reducer (wave 1 of the workgroups with h>>2 == s; 16 output columns each)
    s_lshr_b32 s35, s4, 2
    s_cmp_eq_u32 s35, s5
    s_cselect_b32 s53, s6, 0
    s_cmp_eq_u32 s53, 1
    s_waitcnt lgkmcnt(0)
    s_load_dword s34, s[32:33], 0
    s_cbranch_scc0 L_nosmall
    global_load_ushort v214, v204, s[8:9]
    global_load_ushort v215, v204, s[26:27]
    global_load_ushort v216, v204, s[28:29]
    ''')
    if o['ytouch'] in (1, 2, 3) and not o['ytaux']:
        f = {1: '', 2: 'sc1', 3: 'nt'}[o['ytouch']]
        g(f'''
        global_load_dword v216, v218, s[32:33] offset:-4096 {f}
        global_load_dword v216, v218, s[32:33] {f}
        global_load_dword v216, v219, s[32:33] offset:-4096 {f}
        global_load_dword v216, v219, s[32:33] {f}
        ''')
        if o['yv'] == 2:
            g(f'''
            global_load_dword v216, v245, s[32:33] offset:-4096 {f}
            global_load_dword v216, v245, s[32:33] {f}
            global_load_dword v216, v246, s[32:33] offset:-4096 {f}
            global_load_dword v216, v246, s[32:33] {f}
            ''')
    g(f'''
    L_nosmall:
    s_barrier
    ''')
    g.stamp(1)
    n = [0]
    fixed = [None]

    def vload(txt):
        w0, w1, i0, i1 = o['sched']
        x = min(1.0, max(0.0, (n[0] - i0) / float(i1 - i0)))
        thr = fixed[0] or int(round(w0 + (w1 - w0) * x))
        if thr != int(thr):
            thr = int(thr) + (n[0] & 1)
        thr = int(thr)
        if n[0] >= thr:
            g(f's_waitcnt vmcnt({thr - 1})')
        elif n[0] > 0 and o['gap']:
            g('s_nop 0')
        g(txt)
        n[0] += 1

    def tile(base, T, sp):
        if KV == 5:
            return [f'global_load_dwordx4 v[{base + 16 * T + 4 * i}:{base + 16 * T + 4 * i + 3}], v{base + 16 * T + (4 if i < 2 else 12)}, {sp} offset:{(-4096, 0)[i & 1]} {NT}' for i in range(4)]
        return [f'global_load_dwordx4 v[{base + 16 * T + 4 * i}:{base + 16 * T + 4 * i + 3}], v{base + 16 * T + 12}, {sp} offset:{1024 * i} {NT}' for i in range(4)]
    seq = []
    for T in range(4):
        seq += tile(KR, T, 's[10:11]')
    for T in range(4):
        seq += tile(VR, T, 's[12:13]')
    seq += [f'global_load_dwordx4 v[{WO + 4 * j}:{WO + 4 * j + 3}], v{WO + 12}, s[16:17] offset:{1024 * j} {WNT}' for j in range(4)]
    NB0 = int(round(4 * o['b0'])); NB1 = int(round(16 + 4 * o['b1']))
    NFIRST = int(min(8, int(o['sched'][0]), *(o['par'][0::2][:2] if o['par'] else [8])))
    pre = g.take()
    gap = o['gap']; o['gap'] = 0
    for l in seq[:NFIRST]:
        vload(l)
    first = g.take()
    g.stamp(2)
    masks(g, M4, M8, 'v7', 'v6')
    g(f'''
    v_and_b32 v7, 0x30, v2
    v_lshl_or_b32 v7, v4, 6, v7
    ''')
    for t in range(4):
        g(f'v_mov_b32 v{200 + t}, {L_ZERO}')
    for t in range(4):
        g(f'v_mov_b32_dpp v{200 + t}, v7 quad_perm:[0,1,2,3] row_mask:0xf bank_mask:{hex(1 << t)}')
    g(f'''
    s_lshl_b32 s36, s4, 3
    s_add_u32 s36, s36, s5
    s_lshl_b32 s36, s36, 10
    s_lshl_b32 s35, s4, 17
    s_add_u32 s35, s35, s37
    s_lshl_b32 s38, s6, 15
    s_add_u32 s35, s35, s38
    v_bfe_u32 v6, v1, 3, 1
    v_lshlrev_b32 v7, 13, v4
    v_lshl_or_b32 v7, v6, 12, v7
    v_lshl_or_b32 v7, v5, 4, v7
    v_add_u32 v{WO + 12}, s35, v7
    ''')
    if o['ogm']:
        g(f'''
        s_lshl_b32 s35, s4, 13
        s_add_u32 s35, s35, {WS_O}
        s_lshl_b32 s38, s6, 11
        s_add_u32 s38, s38, s35
        v_lshlrev_b32 v7, 4, v5
        v_lshl_or_b32 v7, v4, 9, v7
        v_lshl_or_b32 v7, v6, 8, v7
        v_add_u32 v205, s38, v7
        v_and_b32 v7, 15, v1
        v_lshlrev_b32 v8, 9, v7
        v_lshl_or_b32 v8, v4, 7, v8
        s_lshl4_add_u32 s35, s5, s35
        v_add_u32 v206, s35, v8
        ''')
    else:
        g(f'''
    s_lshl_b32 s35, s4, 13
    s_lshl_b32 s38, s6, 8
    s_add_u32 s35, s35, s38
    s_add_u32 s35, s35, {WS_O}
    v_lshlrev_b32 v7, 10, v5
    v_lshl_or_b32 v7, v4, 6, v7
    v_lshl_or_b32 v7, v6, 5, v7
    v_add_u32 v205, s35, v7
    v_and_b32 v7, 15, v1
    v_lshlrev_b32 v8, 6, v7
    v_lshl_or_b32 v8, v4, 4, v8
    s_add_u32 s35, s36, {WS_O}
    v_add_u32 v206, s35, v8
        ''')
    g(f'''
    s_lshl_b32 s35, s6, 9
    s_add_u32 s35, s35, {L_O}
    v_lshl_add_u32 v207, v1, 3, s35
    s_mul_i32 s35, s6, 1280
    s_add_u32 s35, s35, {L_Y}
    v_mul_u32_u24 v8, 320, v4
    v_lshl_add_u32 v8, v7, 4, v8
    v_add_u32 v208, s35, v8
    v_bfe_u32 v8, v1, 2, 1
    v_mul_u32_u24 v8, 320, v8
    v_lshrrev_b32 v9, 3, v1
    v_lshl_add_u32 v8, v9, 4, v8
    v_and_b32 v10, 3, v1
    v_lshl_add_u32 v8, v10, 2, v8
    v_add_u32 v209, {L_Y}, v8
    s_lshl_b32 s35, s5, 5
    s_add_u32 s35, s35, s4
    s_lshl_b32 s35, s35, 9
    s_add_u32 s35, s35, {WS_Y}
    v_lshl_add_u32 v210, v1, 3, s35
    {'v_xor_b32 v244, 0x22000, v210' if o['yv'] == 2 else ''}
    s_lshl_b32 s39, s6, 2
    v_mov_b32 v213, s39
    v_and_b32 v8, 1, v4
    v_cmp_eq_u32 s[42:43], 1, v8
    s_mov_b32 s40, {SPIN}
    s_waitcnt lgkmcnt(0)
    s_add_u32 s34, s34, 0x01010101
    ''')
    setup = g.take()
    mixed = []
    for l in first:
        mixed.append(l)
        k = gap
        while k > 0 and setup:
            x = setup.pop(0)
            mixed.append(x)
            if not x.strip().startswith(';'):
                k -= 1
    g.L = pre + mixed + setup

    def run_to_b1(upto):
        for i in range(NFIRST, upto):
            vload(seq[i])
            if i + 1 == NB0:
                if 'b' not in o['skip']:
                    g('s_barrier')
                g.stamp(3)
                fixed[0] = o['thr2']
    NEND = len(seq) if o['pure'] else NB1
    if o['par']:
        e0, e1, o0, o1 = o['par'][:4]
        classes = [('even', e0, e1), ('odd', o0, o1)]
        if o['slot3']:
            classes.append(('s3',) + tuple(o['slot3']))
            g('s_lshr_b32 s35, s2, 5\ns_cmp_eq_u32 s35, 3\ns_cbranch_scc1 L_s3')
        g('s_getreg_b32 s35, hwreg(HW_REG_XCC_ID, 0, 1)')
        g('s_cmp_eq_u32 s35, 1')
        g('s_cbranch_scc1 L_odd')
        base = n[0]
        for k, (nm, a, b) in enumerate(classes):
            if k:
                g(f'L_{nm}:')
            n[0] = base; fixed[0] = a; o['thr2'] = b
            run_to_b1(NEND)
            if k + 1 < len(classes):
                g('s_branch L_join')
        g('L_join:')
    else:
        run_to_b1(NEND)
    rest = seq[NEND:]
    if o['pure']:
        g.stamp(4)
        for l in rest:
            vload(l)
        g('s_waitcnt vmcnt(4)')
        for i in (5, 6, 7, 11): g.stamp(i)
        g('s_waitcnt vmcnt(0)')
        for i in (8, 9, 10): g.stamp(i)
        if o.get('fin') is not None:
            g(f'''
            s_cmp_eq_u32 s53, 1
            s_cbranch_scc0 L_end
            s_mov_b64 exec, 0x00ff00ff
            global_store_short v204, v176, s[28:29] {o['fin']}
            ''')
        g('s_add_u32 s6, s6, 1')
        g.stamp_out(13, 's6')
        g('s_endpgm')

    npw = [0]

    def parwait():
        if o['par'] and len(o['par']) > 4:
            npw[0] += 1
            g(f's_cbranch_scc1 L_pw{npw[0]}x')
            g(f's_waitcnt vmcnt({o["par"][4] - 1})')
            g(f'L_pw{npw[0]}x:')

    def sprinkle(k):
        k = min(k, len(rest))
        if k == 0:
            return
        lab = wskip()
        parwait()
        for _ in range(k):
            if o['spthr']:
                g(f's_waitcnt vmcnt({o["spthr"] - 1})')
            g(rest.pop(0))
        g(lab)
    g.stamp(4)
    g('s_barrier')
    g.stamp(5)
    g('L_warm1:')
    for t in range(4):
        g(f'ds_read_b128 v[{QB + 4 * t}:{QB + 4 * t + 3}], v{200 + t}')
    g(f'''
    v_mov_b32 v13, 0
    ds_read_b32 v13, v13 offset:{L_FLAG}
    s_waitcnt vmcnt({NB1 - 16}) lgkmcnt(0)
    ''')
    for tp in range(4):
        for T in range(4):
            g(mfma(DT + 4 * T, KR + 16 * T + 4 * tp, QB + 4 * tp, tp == 0))
    g('v_readfirstlane_b32 s52, v13')
    sprinkle(o['sp'][0])
    g('s_nop 3')
    for r in range(4):
        for T in range(4):
            if r == 0:
                g(f'v_mov_b32_dpp v{8 + T}, v{DT + 4 * T} quad_perm:[0,0,0,0] {DPPF}')
            else:
                g(f'v_add_f32_dpp v{8 + T}, v{DT + 4 * T + r}, v{8 + T} quad_perm:[{r},{r},{r},{r}] {DPPF}')
    g('; s = bf16(bf16(q.k) * 128^-0.5), true max over the workgroup (B2), p = exp(s - max), l = sum p')
    sc = hex(f2u(128 ** -0.5))
    g(f'''
    v_cvt_pk_bf16_f32 v12, v8, v9
    v_cvt_pk_bf16_f32 v13, v10, v11
    v_lshlrev_b32 v8, 16, v12
    v_and_b32 v9, 0xffff0000, v12
    v_lshlrev_b32 v10, 16, v13
    v_and_b32 v11, 0xffff0000, v13
    v_mul_f32 v8, {sc}, v8
    v_mul_f32 v9, {sc}, v9
    v_mul_f32 v10, {sc}, v10
    v_mul_f32 v11, {sc}, v11
    v_cvt_pk_bf16_f32 v12, v8, v9
    v_cvt_pk_bf16_f32 v13, v10, v11
    v_lshlrev_b32 v8, 16, v12
    v_and_b32 v9, 0xffff0000, v12
    v_lshlrev_b32 v10, 16, v13
    v_and_b32 v11, 0xffff0000, v13
    v_max_f32 v12, v8, v9
    v_max3_f32 v12, v10, v11, v12
    s_nop 1
    v_max_f32_dpp v12, v12, v12 row_ror:4 {DPPF}
    s_nop 1
    v_max_f32_dpp v12, v12, v12 row_ror:8 {DPPF}
    s_nop 1
    v_max_f32_dpp v12, v12, v12 row_bcast:15 row_mask:0xa bank_mask:0xf
    s_nop 1
    v_max_f32_dpp v12, v12, v12 row_bcast:31 row_mask:0xc bank_mask:0xf
    s_nop 0
    v_readlane_b32 s35, v12, 63
    v_mov_b32 v13, 0
    s_nop 0
    v_mov_b32 v12, s35
    ds_write_b32 v213, v12 offset:{L_MAX}
    ''')
    lab = wskip()
    if rest: parwait()
    for _ in range(min(o['sp'][1], len(rest))):
        if o['spthr']:
            g(f's_waitcnt vmcnt({o["spthr"] - 1})')
        g(rest.pop(0))
    g(f'''
    s_waitcnt lgkmcnt(0)
    s_barrier
    {lab}
    ds_read_b128 v[176:179], v13 offset:{L_MAX}
    s_mov_b32 s35, {hex(f2u(LOG2E))}
    s_waitcnt lgkmcnt(0)
    v_max_f32 v12, v176, v177
    v_max3_f32 v12, v178, v179, v12
    v_mul_f32 v217, s35, v12
    v_fma_f32 v8, v8, s35, -v217
    v_fma_f32 v9, v9, s35, -v217
    v_fma_f32 v10, v10, s35, -v217
    v_fma_f32 v11, v11, s35, -v217
    v_exp_f32 v8, v8
    v_exp_f32 v9, v9
    v_exp_f32 v10, v10
    v_exp_f32 v11, v11
    ''')
    sprinkle(o['sp'][2])
    g(f'''
    s_nop 0
    v_add_f32 v12, v8, v9
    v_add_f32 v13, v10, v11
    v_cvt_pk_bf16_f32 v8, v8, v8
    v_add_f32 v12, v12, v13
    v_cvt_pk_bf16_f32 v9, v9, v9
    v_cvt_pk_bf16_f32 v10, v10, v10
    v_add_f32_dpp v12, v12, v12 row_ror:4 {DPPF}
    v_cvt_pk_bf16_f32 v11, v11, v11
    ''')
    thread = [f'v_add_f32_dpp v12, v12, v12 row_ror:8 {DPPF}',
              'v_add_f32_dpp v12, v12, v12 row_bcast:15 row_mask:0xa bank_mask:0xf',
              'v_add_f32_dpp v12, v12, v12 row_bcast:31 row_mask:0xc bank_mask:0xf',
              'v_readlane_b32 s35, v12, 63',
              'v_mov_b32 v12, s35',
              f'ds_write_b32 v213, v12 offset:{L_SUM}']
    for t in range(16):
        for j in range(4):
            g(f'v_and_b32_dpp v{KR + 4 * t + j}, v{8 + t // 4}, v{M4 + j} row_newbcast:{4 * (t % 4)} {DPPF}')
        if t < len(thread):
            g(thread[t])
        if t == 7:
            sprinkle((len(rest) + 1) // 2)
    sprinkle(99)
    g.stamp(6)
    for t in range(16):
        if t in (0, 4, 8):
            g(f's_waitcnt vmcnt({19 - (t + 3)})')
        elif t >= 12:
            g(f's_waitcnt vmcnt({19 - t})')
        g(mfma(OA, KR + 4 * t, VR + 4 * t, t == 0))
    g.stamp(7)
    g(f'''
    s_cmp_eq_u32 s6, 0
    v_mov_b32 v13, 0
    s_nop 5
    ds_write_b64 v207, v[{OA}:{OA + 1}]
    s_waitcnt lgkmcnt(0)
    s_barrier
    ''')
    g.stamp(11)
    g(f'''
    ; B3 passed: wave 1 of the workgroup (w = 0) adds the four partial o, publishes {{o0, o1, tag, max|sum}} per lane
    s_cbranch_scc0 L_pub1
    {'s_waitcnt lgkmcnt(0)' if o['diag'] else ''}
    ds_read2st64_b64 v[176:179], v207 offset0:1 offset1:2
    ds_read_b64 v[180:181], v207 offset:1536
    ds_read_b128 v[184:187], v13 offset:{L_SUM}
    v_mov_b32 v{OA + 2}, s34
    s_cmp_eq_u32 s52, {0 if o['loc'] else -1}
    s_waitcnt lgkmcnt(2)
    v_pk_add_f32 v[{OA}:{OA + 1}], v[{OA}:{OA + 1}], v[176:177]
    s_waitcnt lgkmcnt(1)
    v_pk_add_f32 v[178:179], v[178:179], v[180:181]
    s_waitcnt lgkmcnt(0)
    v_pk_add_f32 v[184:185], v[184:185], v[186:187]
    v_pk_add_f32 v[{OA}:{OA + 1}], v[{OA}:{OA + 1}], v[178:179]
    v_add_f32 v184, v184, v185
    ''')
    lab = wskip()
    g(f'''
    v_cndmask_b32 v{OA + 3}, v217, v184, s[42:43]
    s_cbranch_scc0 L_farpub
    global_store_dwordx4 v206, v[{OA}:{OA + 3}], s[32:33] {o['ostf']}
    L_pub1:
    ''')
    bl = '''
    s_cmp_eq_u32 s53, 1
    s_cbranch_scc0 L_nob
    global_load_dwordx4 v[228:231], v211, s[32:33] offset:-4096 sc1
    global_load_dwordx4 v[232:235], v211, s[32:33] sc1
    global_load_dwordx4 v[236:239], v212, s[32:33] offset:-4096 sc1
    global_load_dwordx4 v[240:243], v212, s[32:33] sc1
    L_nob:
    '''
    if not o['blate']:
        g(bl)
    g(f'''
    {'s_barrier' if o['b3b'] else ''}
    {'s_memrealtime s[64:65]' if o.get('wost') else ''}
    {'s_waitcnt vmcnt(0)' if o.get('wost') else ''}
    {'s_memrealtime s[72:73]' if o.get('wost') else ''}
    ''')
    if o['h1p']:
        OFF = 128 if o['ogm'] else 16

        def ol(r):
            g(f'global_load_dwordx4 v[{r}:{r + 3}], v205, s[32:33] sc1')
            g(f'global_load_dwordx4 v[{r + 4}:{r + 7}], v205, s[32:33] offset:{OFF} sc1')

        def head(r):
            g(f'''
            v_max_f32_dpp v8, v{r + 3}, v{r + 3} quad_perm:[1,0,3,2] {DPPF}
            s_nop 1
            v_max_f32_dpp v8, v8, v8 quad_perm:[2,3,0,1] {DPPF}
            s_nop 1
            v_max_f32_dpp v8, v8, v8 row_half_mirror {DPPF}
            v_sub_f32 v8, v{r + 3}, v8
            v_exp_f32 v8, v8
            s_cmp_eq_u32 s53, 1
            v_mul_f32 v183, v8, v{r + 7}
            v_pk_mul_f32 v[176:177], v[8:9], v[{r}:{r + 1}] op_sel_hi:[0,1]
            v_pk_mul_f32 v[180:181], v[8:9], v[{r + 4}:{r + 5}] op_sel_hi:[0,1]
            ''')
        ol(160)
        g('L_poll1:')
        ol(168)
        g('''
        s_sub_u32 s40, s40, 1
        s_cbranch_scc1 L_end
        s_waitcnt vmcnt(2)
        v_bitop3_b32 v8, v162, v166, s34 bitop3:0x7e
        v_cmp_ne_u32 vcc, 0, v8
        s_cbranch_vccz L_gotA
        ''')
        ol(160)
        g('''
        s_waitcnt vmcnt(2)
        v_bitop3_b32 v8, v170, v174, s34 bitop3:0x7e
        v_cmp_ne_u32 vcc, 0, v8
        s_cbranch_vccnz L_poll1
        ''')
        head(168)
        g('s_branch L_got')
        g('L_gotA:')
        g(lab)
        g.stamp(8)
        if o['diag']:
            g(f's_sub_u32 s84, {SPIN}, s40')
        g('; merge the eight splits (exact max / sum rescale), normalise, round to bf16, multiply with the wo slice')
        head(160)
        g('L_got:')
        lab2 = wskip()
        g(bl.replace('s_cmp_eq_u32 s53, 1', ''))
        g(lab2)
        g('s_cmp_eq_u32 s6, 0')
    else:
        g(f'''
        {'s_branch L_poll1' if o['sleep1'] else ''}
        L_again1:
        {f's_sleep {o["sleep1"]}' if o['sleep1'] else ''}
        L_poll1:
        global_load_dwordx4 v[176:179], v205, s[32:33] sc1
        global_load_dwordx4 v[180:183], v205, s[32:33] offset:{128 if o['ogm'] else 16} sc1
        s_sub_u32 s40, s40, 1
        s_cbranch_scc1 L_end
        s_waitcnt vmcnt(0)
        v_bitop3_b32 v8, v178, v182, s34 bitop3:0x7e
        v_cmp_ne_u32 vcc, 0, v8
        ''')
        if o['shrink']:
            g('''
            s_and_b64 exec, vcc, vcc
            s_cbranch_scc1 L_again1
            s_mov_b64 exec, -1
            ''')
        else:
            g('s_cbranch_vccnz L_again1')
        if o['blate']:
            g(bl)
        g(f'''
        {lab}
        ''')
        g.stamp(8)
        if o['diag']:
            g(f's_sub_u32 s84, {SPIN}, s40')
        if o.get('pflag') == 1:
            g('s_cmp_eq_u32 s52, 0\ns_cselect_b32 s84, 0, 500\ns_waitcnt lgkmcnt(0)\ns_add_u32 s84, s84, s60')
        if o.get('pflag') == 2:
            g('s_mul_i32 s84, s84, 50\ns_waitcnt lgkmcnt(0)\ns_add_u32 s84, s84, s60')
        g(f'''
        ; merge the eight splits (exact max / sum rescale), normalise, round to bf16, multiply with the wo slice
        v_max_f32_dpp v8, v179, v179 quad_perm:[1,0,3,2] {DPPF}
        s_nop 1
        v_max_f32_dpp v8, v8, v8 quad_perm:[2,3,0,1] {DPPF}
        s_nop 1
        v_max_f32_dpp v8, v8, v8 row_half_mirror {DPPF}
        v_sub_f32 v8, v179, v8
        v_exp_f32 v8, v8
        s_cmp_eq_u32 s6, 0
        v_mul_f32 v183, v8, v183
        v_pk_mul_f32 v[176:177], v[8:9], v[176:177] op_sel_hi:[0,1]
        v_pk_mul_f32 v[180:181], v[8:9], v[180:181] op_sel_hi:[0,1]
        ''')
    for ctl in ('quad_perm:[1,0,3,2]', 'quad_perm:[2,3,0,1]', 'row_half_mirror'):
        for r in (183, 176, 177, 180, 181):
            g(f'v_add_f32_dpp v{r}, v{r}, v{r} {ctl} {DPPF}')
        if ctl == 'row_half_mirror':
            g.L.insert(len(g.L) - 2, '    v_rcp_f32 v8, v183')
    src = (176, 177, 180, 181)
    g('v_pk_mul_f32 v[176:177], v[8:9], v[176:177] op_sel_hi:[0,1]')
    g('v_pk_mul_f32 v[180:181], v[8:9], v[180:181] op_sel_hi:[0,1]')
    g('v_mov_b32 v9, s34')
    for j in range(4):
        g(f'v_cvt_pk_bf16_f32 v{src[j]}, v{src[j]}, v{src[j]}')
    for j in range(5):
        if j < 4:
            for jj in range(4):
                g(f'v_and_b32 v{KR + 4 * j + jj}, v{src[j]}, v{M8 + jj}')
        else:
            g('s_nop 0')
        if j >= 1:
            g(mfma(YA, KR + 4 * (j - 1), WO + 4 * (j - 1), j == 1))
    lab = wskip()
    g(f'''
    s_nop {6 if WARM else 7}
    ds_write_b128 v208, v[{YA}:{YA + 3}]
    s_waitcnt lgkmcnt(0)
    s_barrier
    s_cbranch_scc0 L_notw0
    {lab}
    ''')
    g('; B4 passed: w = 0 adds the eight partial y per column and publishes {y, tag}')
    for w in range(4):
        g(f'ds_read_b32 v{176 + 2 * w}, v209 offset:{1280 * w}')
        g(f'ds_read_b32 v{177 + 2 * w}, v209 offset:{1280 * w + 768}')
    if WARM:
        g('s_cbranch_execz L_warm2')
    g(f'''
    s_waitcnt lgkmcnt(4)
    v_pk_add_f32 v[176:177], v[176:177], v[178:179]
    s_waitcnt lgkmcnt(0)
    v_pk_add_f32 v[180:181], v[180:181], v[182:183]
    v_pk_add_f32 v[176:177], v[176:177], v[180:181]
    v_add_f32 v8, v176, v177
    global_store_dwordx2 v210, v[8:9], s[32:33] sc1
    ''')
    if o['yv'] == 2:
        g('global_store_dwordx2 v244, v[8:9], s[32:33] sc1')
    if o['oclean'] and o['ogm']:
        g(f'''
        s_lshl_b32 s35, s5, 1
        s_lshl_b32 s35, 0x00030003, s35
        s_mov_b32 exec_lo, s35
        s_mov_b32 exec_hi, s35
        global_store_dwordx4 v206, v[{OA}:{OA + 3}], s[32:33] sc1
        ''')
    g.stamp(9)
    g.stamp_out(13, '1')
    g('s_endpgm')
    g('; ---- final reducer: gate = silu(MLP) while the y partials are in flight, then out = x + bf16(sum y) * gate')
    g('L_notw0:')
    g.stamp(9)
    g(f'''
    s_cmp_eq_u32 s53, 1
    s_cbranch_scc0 L_done
    L_warm2:
    ''')

    def yloads():
        g('''
        global_load_dwordx4 v[176:179], v218, s[32:33] offset:-4096 sc1
        global_load_dwordx4 v[180:183], v218, s[32:33] sc1
        global_load_dwordx4 v[184:187], v219, s[32:33] offset:-4096 sc1
        global_load_dwordx4 v[188:191], v219, s[32:33] sc1
        ''')
        if o['yv'] == 2:
            g('''
            global_load_dwordx4 v[16:19], v245, s[32:33] offset:-4096 sc1
            global_load_dwordx4 v[20:23], v245, s[32:33] sc1
            global_load_dwordx4 v[24:27], v246, s[32:33] offset:-4096 sc1
            global_load_dwordx4 v[28:31], v246, s[32:33] sc1
            ''')

    def tail(r):
        g(f'''
        v_add_f32_dpp v{r}, v{r}, v{r} row_ror:8 {DPPF}
        v_add_f32_dpp v{r + 2}, v{r + 2}, v{r + 2} row_ror:8 {DPPF}
        s_nop 1
        v_permlane16_swap_b32 v{r}, v{r + 2}
        v_add_f32 v{r}, v{r}, v{r + 2}
        v_mov_b32 v{r + 2}, v{r}
        s_nop 1
        v_permlane32_swap_b32 v{r}, v{r + 2}
        v_add_f32 v{r}, v{r}, v{r + 2}
        v_cvt_pk_bf16_f32 v{r}, v{r}, v{r}
        v_and_b32 v{r}, 0xffff0000, v{r}
        ''')

    def fold1(r, lab):
        g(f'''
        s_waitcnt vmcnt(2)
        v_bitop3_b32 v8, v{r + 1}, v{r + 3}, s34 bitop3:0x7e
        v_bitop3_b32 v9, v{r + 5}, v{r + 7}, s34 bitop3:0x7e
        s_waitcnt vmcnt(0)
        v_bitop3_b32 v10, v{r + 9}, v{r + 11}, s34 bitop3:0x7e
        v_bitop3_b32 v11, v{r + 13}, v{r + 15}, s34 bitop3:0x7e
        v_or3_b32 v8, v8, v9, v10
        v_or_b32 v8, v8, v11
        v_cmp_ne_u32 vcc, 0, v8
        s_cbranch_vccnz {lab}
        v_add_f32 v{r}, v{r}, v{r + 4}
        v_add_f32 v{r + 2}, v{r + 2}, v{r + 6}
        v_add_f32 v{r + 8}, v{r + 8}, v{r + 12}
        v_add_f32 v{r + 10}, v{r + 10}, v{r + 14}
        v_add_f32 v{r}, v{r}, v{r + 8}
        v_add_f32 v{r + 2}, v{r + 2}, v{r + 10}
        s_nop 0
        ''')
        tail(r)

    def fold2(r, q, lab):
        g('s_waitcnt vmcnt(4)')
        for i in range(4):
            g(f'v_bitop3_b32 v{8 + i}, v{r + 4 * i + 1}, v{r + 4 * i + 3}, s34 bitop3:0x7e')
        for i in range(4):
            g(f'v_cmp_eq_u32 s[{44 + 2 * i}:{45 + 2 * i}], 0, v{8 + i}')
        for i in range(4):
            g(f's_waitcnt vmcnt({3 - i})')
            g(f'v_bitop3_b32 v{12}, v{q + 4 * i + 1}, v{q + 4 * i + 3}, s34 bitop3:0x7e')
            g(f'v_cndmask_b32 v{r + 4 * i}, v{q + 4 * i}, v{r + 4 * i}, s[{44 + 2 * i}:{45 + 2 * i}]')
            g(f'v_min_u32 v{8 + i}, v{8 + i}, v12')
            g(f'v_cndmask_b32 v{r + 4 * i + 2}, v{q + 4 * i + 2}, v{r + 4 * i + 2}, s[{44 + 2 * i}:{45 + 2 * i}]')
        g(f'''
        v_or3_b32 v8, v8, v9, v10
        v_or_b32 v8, v8, v11
        v_cmp_ne_u32 vcc, 0, v8
        v_add_f32 v{r}, v{r}, v{r + 4}
        v_add_f32 v{r + 2}, v{r + 2}, v{r + 6}
        s_cbranch_vccnz {lab}
        v_add_f32 v{r + 8}, v{r + 8}, v{r + 12}
        v_add_f32 v{r + 10}, v{r + 10}, v{r + 14}
        v_add_f32 v{r}, v{r}, v{r + 8}
        v_add_f32 v{r + 2}, v{r + 2}, v{r + 10}
        s_nop 0
        ''')
        tail(r)

    def fold(r, lab, waits):
        g(f'''
        {'s_waitcnt vmcnt(2)' if waits else ''}
        v_bitop3_b32 v8, v{r + 1}, v{r + 3}, s34 bitop3:0x7e
        v_bitop3_b32 v9, v{r + 5}, v{r + 7}, s34 bitop3:0x7e
        v_add_f32 v{r}, v{r}, v{r + 4}
        v_add_f32 v{r + 2}, v{r + 2}, v{r + 6}
        {'s_waitcnt vmcnt(0)' if waits else ''}
        v_bitop3_b32 v10, v{r + 9}, v{r + 11}, s34 bitop3:0x7e
        v_bitop3_b32 v11, v{r + 13}, v{r + 15}, s34 bitop3:0x7e
        v_or3_b32 v8, v8, v9, v10
        v_or_b32 v8, v8, v11
        v_cmp_ne_u32 vcc, 0, v8
        v_add_f32 v{r + 8}, v{r + 8}, v{r + 12}
        v_add_f32 v{r + 10}, v{r + 10}, v{r + 14}
        v_add_f32 v{r}, v{r}, v{r + 8}
        v_add_f32 v{r + 2}, v{r + 2}, v{r + 10}
        s_cbranch_vccnz {lab}
        v_add_f32_dpp v{r}, v{r}, v{r} row_ror:8 {DPPF}
        v_add_f32_dpp v{r + 2}, v{r + 2}, v{r + 2} row_ror:8 {DPPF}
        s_nop 1
        v_permlane16_swap_b32 v{r}, v{r + 2}
        v_add_f32 v{r}, v{r}, v{r + 2}
        v_mov_b32 v{r + 2}, v{r}
        s_nop 1
        v_permlane32_swap_b32 v{r}, v{r + 2}
        v_add_f32 v{r}, v{r}, v{r + 2}
        v_cvt_pk_bf16_f32 v{r}, v{r}, v{r}
        v_and_b32 v{r}, 0xffff0000, v{r}
        ''')
    NS_ = o['yv'] - 1 if o['yv'] >= 3 else 0
    SETS = [16 + 16 * i for i in range(NS_)]

    def yl(r):
        g(f'''
        global_load_dwordx4 v[{r}:{r + 3}], v218, s[32:33] offset:-4096 sc1
        global_load_dwordx4 v[{r + 4}:{r + 7}], v218, s[32:33] sc1
        global_load_dwordx4 v[{r + 8}:{r + 11}], v219, s[32:33] offset:-4096 sc1
        global_load_dwordx4 v[{r + 12}:{r + 15}], v219, s[32:33] sc1
        ''')
    lab = wskip()
    if NS_:
        yl(SETS[0])
    else:
        yloads()
    g(lab)
    g('''
    v_lshlrev_b32 v214, 16, v214
    v_lshlrev_b32 v215, 16, v215
    ''')
    if o['blate']:
        g(f's_waitcnt vmcnt({8 if o["yv"] == 2 else 4})')
    g('''
    L_chkb:
    ''')
    fold(228, 'L_retryb', False)
    g(f'''
    v_add_f32 v228, v228, v215
    v_cvt_pk_bf16_f32 v228, v228, v228
    v_and_b32 v228, 0xffff0000, v228
    v_mul_f32 v8, {hex(f2u(-LOG2E))}, v228
    v_exp_f32 v8, v8
    s_nop 0
    v_add_f32 v8, 1.0, v8
    v_rcp_f32 v8, v8
    s_nop 0
    v_mul_f32 v215, v228, v8
    v_cvt_pk_bf16_f32 v215, v215, v215
    v_and_b32 v215, 0xffff0000, v215
    ''')
    if NS_:
        lab = wskip()
        for r in SETS[1:-1]:
            yl(r)
        g('L_poll2:')
        for i, r in enumerate(SETS):
            yl(SETS[i - 1])
            if i == 0:
                g('s_sub_u32 s40, s40, 1\ns_cbranch_scc1 L_end')
            g(f's_waitcnt vmcnt({4 * (NS_ - 1)})')
            if i == NS_ - 1:
                g(lab)
            g(f'''
            v_bitop3_b32 v8, v{r + 1}, v{r + 3}, s34 bitop3:0x7e
            v_bitop3_b32 v9, v{r + 5}, v{r + 7}, s34 bitop3:0x7e
            v_bitop3_b32 v10, v{r + 9}, v{r + 11}, s34 bitop3:0x7e
            v_bitop3_b32 v11, v{r + 13}, v{r + 15}, s34 bitop3:0x7e
            v_or3_b32 v8, v8, v9, v10
            v_or_b32 v8, v8, v11
            v_cmp_ne_u32 vcc, 0, v8
            v_add_f32 v176, v{r}, v{r + 4}
            v_add_f32 v178, v{r + 2}, v{r + 6}
            v_add_f32 v184, v{r + 8}, v{r + 12}
            v_add_f32 v186, v{r + 10}, v{r + 14}
            {'s_cbranch_vccz L_ydone' if i < NS_ - 1 else 's_cbranch_vccnz L_poll2'}
            ''')
        g('''
        L_ydone:
        v_add_f32 v176, v176, v184
        v_add_f32 v178, v178, v186
        s_nop 0
        ''')
        tail(176)
    else:
        g('s_branch L_chky\nL_poll2:')
        yloads()
        g('''
        s_sub_u32 s40, s40, 1
        s_cbranch_scc1 L_end
        L_chky:
        ''')
    if NS_:
        pass
    elif o['yv'] == 0:
        fold(176, 'L_poll2', True)
    elif o['yv'] == 1:
        fold1(176, 'L_poll2')
    else:
        fold2(176, 16, 'L_poll2')
    g(f'''
    v_mul_f32 v176, v176, v215
    v_cvt_pk_bf16_f32 v176, v176, v176
    v_and_b32 v176, 0xffff0000, v176
    v_add_f32 v176, v176, v214
    {'s_cbranch_execz L_warm3' if WARM else ''}
    v_cvt_pk_bf16_f32 v176, v176, v176
    s_mov_b64 exec, 0x00ff00ff
    global_store_short v204, v176, s[28:29] {o['outf']}
    s_cmp_eq_u32 s2, 0
    s_cbranch_scc0 L_done
    v_mov_b32 v8, 0
    v_mov_b32 v9, s34
    s_mov_b64 exec, 1
    global_store_dword v8, v9, s[32:33] {o.get('epf', '')}
    L_done:
    ''')
    g.stamp(10)
    if o['diag']:
        g('s_add_u32 s6, s6, 1')
    g.stamp_out(13, 's6')
    if o['probe']:
        probe(g, o)
    g(f'''
    L_end:
    s_endpgm
    L_retryb:
    global_load_dwordx4 v[228:231], v211, s[32:33] offset:-4096 sc1
    global_load_dwordx4 v[232:235], v211, s[32:33] sc1
    global_load_dwordx4 v[236:239], v212, s[32:33] offset:-4096 sc1
    global_load_dwordx4 v[240:243], v212, s[32:33] sc1
    s_sub_u32 s40, s40, 1
    s_cbranch_scc1 L_end
    s_waitcnt vmcnt(0)
    s_branch L_chkb
    L_farpub:
    global_store_dwordx4 v206, v[{OA}:{OA + 3}], s[32:33] sc1
    s_branch L_pub1
    ''')


def probe(g, o):
    wv, idx, kind, K = o['probe']
    mm = 'v_max_u32' if kind == 'max' else 'v_min_u32'
    g(f'''
    s_cmp_eq_u32 s2, 0
    s_cbranch_scc0 L_end
    s_cmp_eq_u32 s6, 2
    s_cbranch_scc0 L_end
    s_mov_b64 exec, -1
    s_memrealtime s[50:51]
    s_waitcnt lgkmcnt(0)
    L_pw:
    s_memrealtime s[52:53]
    s_waitcnt lgkmcnt(0)
    s_sub_u32 s52, s52, s50
    s_cmp_lt_u32 s52, 300
    s_cbranch_scc1 L_pw
    v_lshlrev_b32 v2, 10, v1
    v_add_u32 v2, {WS_ST}, v2
    ''')
    for i in range(4):
        g(f'global_load_dword v{8 + i}, v2, s[32:33] sc1')
        g(f'global_load_dword v{12 + i}, v2, s[32:33] offset:{wv * 128 + idx * 4} sc1')
        g('v_add_u32 v2, 0x10000, v2')
    g(f'''
    s_waitcnt vmcnt(0)
    v_min_u32 v8, v8, v9
    v_min_u32 v10, v10, v11
    v_min_u32 v8, v8, v10
    {mm} v12, v12, v13
    {mm} v14, v14, v15
    {mm} v12, v12, v14
    ''')
    wave_sum(g, ['v8'], 'v_min_u32')
    wave_sum(g, ['v12'], mm)
    g(f'''
    s_nop 1
    v_readlane_b32 s52, v8, 63
    v_readlane_b32 s53, v12, 63
    s_nop 3
    s_sub_u32 s54, s53, s52
    ''')
    if kind == 'raw':
        g(f'''
        v_mov_b32 v2, {WS_ST + 0x100000}
        global_load_dword v2, v2, s[32:33] sc1
        s_waitcnt vmcnt(0)
        v_readfirstlane_b32 s54, v2
        s_nop 3
        ''')
    g(f'''
    s_min_u32 s54, s54, 3000
    s_mul_i32 s54, s54, {K}
    s_add_u32 s54, s54, 400
    L_pw2:
    s_memrealtime s[52:53]
    s_waitcnt lgkmcnt(0)
    s_sub_u32 s52, s52, s50
    s_cmp_lt_u32 s52, s54
    s_cbranch_scc1 L_pw2
    ''')


def gen_aux(g, o):
    WNT = o['wnt'] if isinstance(o['wnt'], str) else ('nt' if o['wnt'] else '')
    WARM = o['warm']
    YT = 1 if o['ytouch'] >= 4 else 0
    WQ = 16; W1 = 80; W2 = 144; E = [f'v{168 + i}' for i in range(8)]; AS = (176, 180); QA = 184; ZA = 188
    g(f'''
    L_aux:
    s_setprio 3
    {'s_lshr_b32 s58, s2, 3' if o['qlin'] else 's_mov_b32 s58, s4'}
    {'s_and_b32 s59, s2, 7' if o['qlin'] else 's_mov_b32 s59, s5'}
    v_and_b32 v2, 15, v1
    v_lshrrev_b32 v3, 4, v1
    v_lshlrev_b32 v10, 4, v1
    s_lshl_b32 s6, s59, 7
    v_lshlrev_b32 v11, 1, v3
    v_lshl_or_b32 v11, v2, 3, v11
    v_add_u32 v8, s6, v11
    s_lshl_b32 s7, s59, 19
    s_lshl_b32 s35, s58, 8
    s_add_u32 s7, s7, s35
    v_lshlrev_b32 v12, 4, v2
    v_lshl_or_b32 v13, v3, 13, v12
    v_add_u32 v{WQ}, s7, v13
    s_mov_b32 s38, 0x8000
    ''')
    if o.get('st8'): g.stamp(8)
    g('s_waitcnt lgkmcnt(0)')
    g.stamp(1)
    g('''
    global_load_dwordx4 v[4:7], v10, s[8:9]
    global_load_ushort v8, v8, s[8:9]
    ''')
    if o['ksplit']:
        g('s_load_dwordx8 s[24:31], s[0:1], 64\ns_load_dwordx2 s[32:33], s[0:1], 96')
    else:
        g('s_load_dword s34, s[32:33], 0')
    for t in range(16):
        r = WQ + 4 * t
        if t < 15:
            g(f'v_add_u32 v{r + 4}, s38, v{r}')
        g(f'global_load_dwordx4 v[{r}:{r + 3}], v{r}, s[14:15] {WNT}')
    g(f'''
    ''')
    if o['qlin']:
        g(f'''
        s_mul_i32 s35, s58, 43
        s_lshr_b32 s35, s35, 3
        s_lshl_b32 s35, s35, 4
        s_mul_i32 s7, s59, {64 * 2752}
        s_add_u32 s7, s7, s35
        s_mul_i32 s36, s4, 43
        s_add_u32 s37, s36, 43
        s_lshr_b32 s36, s36, 3
        s_lshr_b32 s37, s37, 3
        s_sub_u32 s37, s37, s36
        s_lshl_b32 s35, s36, 4
        s_lshl_b32 s6, s5, 7
        ''')
    else:
        g(f'''
    s_and_b32 s36, s4, 7
    s_lshr_b32 s37, s4, 3
    s_lshl2_add_u32 s36, s36, s37
    s_mul_i32 s36, s36, 43
    s_add_u32 s37, s36, 43
    s_lshr_b32 s36, s36, 3
    s_lshr_b32 s37, s37, 3
    s_sub_u32 s37, s37, s36
    s_mul_i32 s7, s5, {64 * 2752}
    s_lshl_b32 s35, s36, 4
    s_add_u32 s7, s7, s35
        ''')
    g(f'''
    v_mul_u32_u24 v13, 2752, v3
    v_add3_u32 v{W1}, v13, v12, s7
    v_lshl_or_b32 v203, v3, 2, v12
    ''')
    if o['mergez']:
        g('''
        v_and_b32 v9, 7, v2
        v_min_u32 v9, 5, v9
        v_lshlrev_b32 v9, 4, v9
        v_lshl_or_b32 v9, v3, 2, v9
        v_lshrrev_b32 v13, 3, v2
        v_lshl_or_b32 v9, v13, 1, v9
        v_add_u32 v9, s35, v9
        ''')
    else:
        g('v_add_u32 v9, s35, v203')
    g(f'''
    s_lshl_b32 s7, s36, 13
    s_add_u32 s7, s7, s6
    v_lshrrev_b32 v13, 3, v2
    v_lshl_or_b32 v13, v3, 1, v13
    v_lshlrev_b32 v13, 10, v13
    v_and_b32 v14, 7, v2
    v_lshl_or_b32 v13, v14, 4, v13
    v_add_u32 v{W2}, s7, v13
    s_movk_i32 s38, 11008
    s_movk_i32 s39, 8192
    s_mov_b32 s54, 0x003f003f
    s_mov_b32 s55, s54
    s_mov_b64 exec, s[54:55]
    ''')
    for t in range(16):
        r = W1 + 4 * t
        if t < 15:
            g(f'v_add_u32 v{r + 4}, s38, v{r}')
        g(f'global_load_dwordx4 v[{r}:{r + 3}], v{r}, s[20:21] {WNT}')
    if o['ksplit']:
        g('s_waitcnt lgkmcnt(0)\ns_load_dword s34, s[32:33], 0')
    if o['mergez']:
        g('s_mov_b64 exec, -1')
        g('global_load_ushort v9, v9, s[22:23]')
    else:
        g('global_load_dword v9, v9, s[22:23]')
        g('s_mov_b64 exec, -1')
    for t in range(6):
        r = W2 + 4 * t
        if t < 5:
            g(f'v_add_u32 v{r + 4}, s39, v{r}')
        if t == 5 and o['w2skip']:
            g(f'''
            s_cmp_eq_u32 s37, 5
            s_cselect_b64 exec, 1, -1
            s_cselect_b32 s39, s39, 0
            v_subrev_u32 v{r}, s39, v{r}
            global_load_dwordx4 v[{r}:{r + 3}], v{r}, s[24:25] {WNT}
            s_mov_b64 exec, -1
            ''')
        else:
            g(f'global_load_dwordx4 v[{r}:{r + 3}], v{r}, s[24:25] {WNT}')
    if o['ytouch'] >= 4:
        nl = {4: 4, 5: 8, 6: 16, 7: 24}[o['ytouch']]
        g(f'''
        s_lshl_b32 s7, s5, 5
        s_add_u32 s7, s7, s4
        s_lshl_b32 s7, s7, 9
        s_add_u32 s7, s7, {WS_Y}
        v_lshl_add_u32 v15, v1, 7, s7
        ''')
        if nl > 4:
            g(f'''
            s_mov_b64 exec, 0xf0
            v_add_u32 v15, {WS_B - WS_Y - 512}, v15
            ''')
        if nl > 8:
            g(f'''
            s_lshl_b32 s7, s2, 10
            s_add_u32 s7, s7, {WS_Q - 1024}
            s_mov_b64 exec, 0xff00
            v_lshl_add_u32 v15, v1, 7, s7
            ''')
        if nl > 16:
            g(f'''
            s_lshl_b32 s7, s4, 3
            s_add_u32 s7, s7, s5
            s_lshl_b32 s7, s7, 10
            s_add_u32 s7, s7, {WS_O - 2048}
            s_mov_b64 exec, 0xff0000
            v_lshl_add_u32 v15, v1, 7, s7
            ''')
        g(f'''
        s_mov_b64 exec, {hex((1 << nl) - 1)}
        global_load_dword v15, v15, s[32:33]
        s_mov_b64 exec, -1
        ''')
    if o['sbpos'] == 'issue' or o['pure'] == 1:
        g('s_barrier')
    g.stamp(2)
    if o['pure'] == 1:
        g('s_waitcnt vmcnt(0)')
        for i in range(3, 10): g.stamp(i)
        g('s_getreg_b32 s80, hwreg(HW_REG_HW_ID)')
        g.stamp_out(11, '0')
        g('s_endpgm')
    masks(g, M4, M8, 'v13', 'v14')
    g(f'''
    s_lshl_b32 s7, s58, 13
    s_lshl_b32 s35, s59, 10
    s_add_u32 s35, s35, s7
    s_add_u32 s35, s35, {WS_Q}
    v_add_u32 v200, s35, v10
    s_lshl_b32 s7, s4, 6
    s_add_u32 s7, s7, {WS_X}
    v_and_b32 v13, 7, v1
    v_lshl_add_u32 v206, v13, 3, s7
    s_lshl3_add_u32 s7, s5, s7
    v_mov_b32 v207, s7
    s_lshl_b32 s7, s4, 13
    s_add_u32 s7, s7, {WS_Q + 4096}
    v_add_u32 v201, s7, v10
    v_add_u32 v202, {hex(WS_Z - WS_Q)}, v201
    v_add_u32 v205, {hex(WS_Z - WS_Q)}, v200
    s_lshl_b32 s7, s5, 5
    s_add_u32 s7, s7, s4
    s_lshl_b32 s7, s7, 9
    s_add_u32 s7, s7, {WS_B}
    v_and_b32 v13, 1, v3
    v_lshlrev_b32 v13, 5, v13
    v_lshl_or_b32 v13, v2, 6, v13
    v_lshrrev_b32 v14, 1, v3
    v_lshl_or_b32 v13, v14, 3, v13
    v_add_u32 v204, s7, v13
    v_and_b32 v13, 3, v1
    v_lshlrev_b32 v13, 2, v13
    v_mov_b32 v14, 0
    ds_write_b32 v13, v14 offset:{L_ZERO}
    s_mov_b32 s40, {SPIN}
    s_getreg_b32 s39, hwreg(HW_REG_XCC_ID, 0, 4)
    s_waitcnt vmcnt({39 + YT})
    ''')
    g.stamp(3)
    for i in range(4):
        g(f'v_lshlrev_b32 {E[2 * i]}, 16, v{4 + i}')
        g(f'v_and_b32 {E[2 * i + 1]}, 0xffff0000, v{4 + i}')
    g('v_lshlrev_b32 v8, 16, v8')

    def normalise_own():
        layernorm_stats(g, E, 'v4', 'v5', 's35', 'v6', 'v7')
        g('v_sub_f32 v8, v8, v6')
        bf_round(g, 'v8', 'v8')
        g('v_mul_f32 v8, v8, v7')
        g('v_cvt_pk_bf16_f32 v8, v8, v8')
        g('s_nop 1')

    def gemv16(src, base, acc, vm0, bar=None):
        for t in range(17):
            if t < 16:
                for j in range(4):
                    g(f'v_and_b32_dpp v{AS[t % 2] + j}, {src}, v{M4 + j} row_newbcast:{t} {DPPF}')
            else:
                g('s_nop 1')
            if t >= 1:
                k = t - 1
                if k % 4 == 0 and k < 12:
                    g(f's_waitcnt vmcnt({vm0 - (k + 3)})')
                elif k >= 12:
                    g(f's_waitcnt vmcnt({vm0 - k})')
                if k == bar:
                    g('s_barrier')
                g(mfma(acc, AS[k % 2], base + 4 * k, k == 0))
    if o['sbpos'] == 'x':
        g('s_barrier')
    g('; xn = layernorm(x); partial q = xn[64 rows] . wq[64 rows, 128 columns]')
    normalise_own()
    gemv16('v8', WQ, QA, 38 + YT, o['sbpos'] if isinstance(o['sbpos'], int) else None)
    for i in range(8):
        g(f'v_sub_f32 {E[i]}, {E[i]}, v6')
    if not o['mergez']:
        g(f'''
        s_waitcnt lgkmcnt(0)
        s_add_u32 s34, s34, 0x01010101
        v_mov_b32 v{QA + 2}, s34
        v_mov_b32 v{QA + 3}, s39
        {'global_load_dword v14, v10, s[8:9]' if 's' in o['skip'] else f'global_store_dwordx4 v200, v[{QA}:{QA + 3}], s[32:33] sc1'}
        ''')
    g.stamp(4)
    g('; y = layernorm(xn); partial z = y[64 rows] . w1[64 rows, 48 columns]')
    for i in range(8):
        bf_round(g, E[i], E[i])
    for i in range(8):
        g(f'v_mul_f32 {E[i]}, {E[i]}, v7')
    for i in range(8):
        bf_round(g, E[i], E[i])
    g('v_and_b32 v8, 0xffff0000, v8')
    normalise_own()
    gemv16('v8', W1, ZA, YT + (22 if o['mergez'] else 23))
    if o['mergez']:
        g(f'''
        s_waitcnt lgkmcnt(0)
        s_add_u32 s34, s34, 0x01010101
        v_mov_b32 v{QA + 3}, s39
        v_mov_b32 v{QA + 2}, s34
        s_mov_b32 s56, 0x3f3f3f3f
        s_mov_b32 s57, s56
        s_nop 1
        v_mov_b32_dpp v{ZA}, v{ZA + 1} row_ror:8 row_mask:0xf bank_mask:0xc
        v_cndmask_b32 v{QA + 3}, v{QA + 3}, v{ZA}, s[56:57]
        {'' if 's' in o['skip'] else f'global_store_dwordx4 v200, v[{QA}:{QA + 3}], s[32:33] sc1'}
        ''')
        if o['qlin']:
            g(f'''
            v_mov_b32 v12, s39
            v_mov_b32 v13, s34
            s_mov_b64 exec, 1
            global_store_dwordx2 v207, v[12:13], s[32:33] sc1
            s_mov_b64 exec, -1
            ''')
    else:
        g(f'''
        s_nop 7
        v_mov_b32 v{ZA + 2}, s34
        v_mov_b32 v{ZA + 3}, s34
        s_mov_b64 exec, s[54:55]
        {'' if 's' in o['skip'] else f'global_store_dwordx4 v205, v[{ZA}:{ZA + 3}], s[32:33] sc1'}
        ''')
    if o['prew'] == 2:
        g(f'''
        s_lshl_b32 s7, s4, 3
        s_add_u32 s7, s7, s5
        s_lshl_b32 s7, s7, 10
        s_add_u32 s7, s7, {WS_O}
        v_and_b32 v14, 7, v1
        v_lshl_add_u32 v14, v14, 7, s7
        global_load_dword v14, v14, s[32:33]
        ''')
    if o['prew'] == 1:
        g(f'''
        ''')
        if o['ogm']:
            g(f'''
            s_lshl_b32 s7, s4, 13
            s_add_u32 s7, s7, {WS_O}
            s_lshl4_add_u32 s7, s5, s7
            v_lshl_add_u32 v14, v1, 7, s7
            ''')
        else:
            g(f'''
        s_lshl_b32 s7, s4, 3
        s_add_u32 s7, s7, s5
        s_lshl_b32 s7, s7, 10
        s_add_u32 s7, s7, {WS_O}
        v_add_u32 v14, s7, v10
            ''')
        g(f'''
        v_not_b32 v{ZA + 2}, v{QA + 2}
        global_store_dwordx4 v14, v[{ZA}:{ZA + 3}], s[32:33]
        ''')
    g.stamp(5)
    g('s_barrier')
    g.stamp(6)
    ZP = 48; QP = 16

    def polls(base, addr, n):
        if 'p' in o['skip']: return
        for p in range(8):
            g(f'global_load_dwordx{n} v[{base + 4 * p}:{base + 4 * p + n - 1}], {addr}, s[32:33] offset:{1024 * p - 4096} sc1')

    def alleq(base, word, sreg):
        for p in range(4):
            g(f'v_bitop3_b32 v{10 + p}, v{base + 8 * p + word}, v{base + 8 * p + 4 + word}, {sreg} bitop3:0x7e')
        g('v_or3_b32 v10, v10, v11, v12')
        g('v_or_b32 v10, v10, v13')

    def sum8(base):
        for st in (1, 2, 4):
            for p in range(0, 8, 2 * st):
                a = base + 4 * p; b = base + 4 * (p + st)
                g(f'v_pk_add_f32 v[{a}:{a + 1}], v[{a}:{a + 1}], v[{b}:{b + 1}]')
    if o['ytouch'] and o['ytaux']:
        g(f'''
        s_lshr_b32 s35, s4, 2
        s_cmp_eq_u32 s35, s5
        s_cbranch_scc0 L_pollq
        s_lshl_b32 s35, s5, 14
        s_and_b32 s7, s4, 3
        s_lshl_b32 s7, s7, 7
        s_add_u32 s35, s35, s7
        s_add_u32 s35, s35, {WS_Y}
        v_and_b32 v14, 31, v1
        v_lshl_add_u32 v14, v14, 9, s35
        global_load_dword v14, v14, s[32:33]
        ''')
    g('; B0 passed: gather the eight partials of this head (tag-checked), q = bf16(sum) -> LDS')
    g('L_pollq:')
    if not o['mergez']:
        g('s_mov_b64 exec, s[54:55]')
        polls(ZP, 'v202', 3)
        g('s_mov_b64 exec, -1')
    polls(QP, 'v201', 4)
    if o['qlin'] and 'p' not in o['skip']:
        g('global_load_dwordx2 v[48:49], v206, s[32:33] sc1')
    g('''
    s_sub_u32 s40, s40, 1
    s_cbranch_scc1 L_end
    s_waitcnt vmcnt(0)
    L_warm3:
    ''')
    alleq(QP, 2, 's34')
    if o['qlin']:
        g('v_xor_b32 v11, s34, v49')
        g('v_or_b32 v10, v10, v11')
    g('v_cmp_ne_u32 vcc, 0, v10')
    if 'p' not in o['skip']: g('s_cbranch_vccnz L_pollq')
    sum8(QP)
    g(f'''
    v_cvt_pk_bf16_f32 v{QP}, v{QP}, v{QP + 1}
    ds_write_b32 v203, v{QP} offset:{L_Q}
    ''')
    if o['qlin']:
        g('''
        v_cmp_ne_u32 vcc, s39, v48
        s_cmp_lg_u64 vcc, 0
        s_cselect_b32 s35, 1, 0
        v_mov_b32 v10, s35
        ''')
    else:
        alleq(QP, 3, 's39')
    if o['mergez'] and not o['qlin']:
        g('s_nop 1')
        g(f'v_mov_b32_dpp v10, v10 row_newbcast:15 {DPPF}')
    if o['diag']:
        g(f's_sub_u32 s80, {SPIN}, s40')
    g(f'''
    v_mov_b32 v11, 0
    ds_write_b32 v11, v10 offset:{L_FLAG}
    {'s_cbranch_execz L_chkz' if WARM else ''}
    s_waitcnt lgkmcnt(0)
    ''')
    g.stamp(7)
    if o['pure'] == 2:
        for i in range(8, 10): g.stamp(i)
        g.stamp_out(11, '0')
        g('s_endpgm')
    g('''
    s_barrier
    s_barrier
    L_chkz:
    ''')
    g('; h = gelu(bf16(bf16(sum z) + b1)); partial MLP output = h[40|48 rows] . w2[rows, 64 columns]')
    k0 = hex(f2u(0.044715)); k1 = hex(f2u(-2.0 * 0.7978845608028654 * LOG2E))
    if o['mergez']:
        if not o.get('st8'): g.stamp(8)
        for st in (1, 2, 4):
            for p in range(0, 8, 2 * st):
                g(f'v_add_f32 v{QP + 4 * p + 3}, v{QP + 4 * p + 3}, v{QP + 4 * (p + st) + 3}')
        z = f'v{QP + 3}'
        bf_round(g, z, z)
        g(f'''
        v_lshlrev_b32 v9, 16, v9
        v_add_f32 {z}, {z}, v9
        ''')
        bf_round(g, z, z)
        g(f'''
        v_mul_f32 v10, {z}, {z}
        v_mul_f32 v10, v10, {z}
        v_fmamk_f32 v10, v10, {k0}, {z}
        v_mul_f32 v10, {k1}, v10
        v_exp_f32 v10, v10
        s_nop 0
        v_add_f32 v10, 1.0, v10
        v_rcp_f32 v10, v10
        s_nop 0
        v_mul_f32 v10, v10, {z}
        v_cvt_pk_bf16_f32 v10, v10, v10
        s_nop 1
        ''')
    else:
        alleq(ZP, 2, 's34')
        g('''
        v_cmp_ne_u32 vcc, 0, v10
        s_and_b64 vcc, vcc, s[54:55]
        ''')
        if 'p' not in o['skip']: g('s_cbranch_vccnz L_retryz')
        g.stamp(8)
        sum8(ZP)
        z0, z1 = f'v{ZP}', f'v{ZP + 1}'
        k0 = hex(f2u(0.044715)); k1 = hex(f2u(-2.0 * 0.7978845608028654 * LOG2E))
        g(f'''
        v_cvt_pk_bf16_f32 {z0}, {z0}, {z1}
        v_lshlrev_b32 v10, 16, v9
        v_and_b32 v11, 0xffff0000, v9
        v_and_b32 {z1}, 0xffff0000, {z0}
        v_lshlrev_b32 {z0}, 16, {z0}
        v_add_f32 {z0}, {z0}, v10
        v_add_f32 {z1}, {z1}, v11
        v_cvt_pk_bf16_f32 {z0}, {z0}, {z1}
        v_and_b32 {z1}, 0xffff0000, {z0}
        v_lshlrev_b32 {z0}, 16, {z0}
        v_mul_f32 v10, {z0}, {z0}
        v_mul_f32 v11, {z1}, {z1}
        v_mul_f32 v10, v10, {z0}
        v_mul_f32 v11, v11, {z1}
        v_fmamk_f32 v10, v10, {k0}, {z0}
        v_fmamk_f32 v11, v11, {k0}, {z1}
        v_mul_f32 v10, {k1}, v10
        v_mul_f32 v11, {k1}, v11
        v_exp_f32 v10, v10
        v_exp_f32 v11, v11
        s_nop 0
        v_add_f32 v10, 1.0, v10
        v_add_f32 v11, 1.0, v11
        v_rcp_f32 v10, v10
        v_rcp_f32 v11, v11
        s_nop 0
        v_mul_f32 v10, v10, {z0}
        v_mul_f32 v11, v11, {z1}
        v_cvt_pk_bf16_f32 v10, v10, v10
        v_cvt_pk_bf16_f32 v11, v11, v11
        s_nop 1
        ''')
    BA = 184
    for jj in range(6):
        if jj == 5:
            g('s_cmp_eq_u32 s37, 5')
            g('s_cbranch_scc1 L_five')
        a = AS[jj % 2]
        g(f'v_mov_b32_dpp v12, v10 row_newbcast:{jj} row_mask:0xf bank_mask:0x3')
        if o['mergez']:
            g(f'v_mov_b32_dpp v12, v10 row_newbcast:{jj + 8} row_mask:0xf bank_mask:0xc')
        else:
            g(f'v_mov_b32_dpp v12, v11 row_newbcast:{jj} row_mask:0xf bank_mask:0xc')
        for j in range(4):
            g(f'v_and_b32 v{a + j}, v12, v{M8 + j}')
        g('s_nop 1')
        g(mfma(BA, a, W2 + 4 * jj, jj == 0))
    g(f'''
    L_five:
    s_nop 7
    v_permlane32_swap_b32 v{BA}, v{BA + 1}
    v_permlane32_swap_b32 v{BA + 2}, v{BA + 3}
    v_mov_b32 v11, s34
    v_mov_b32 v13, s34
    v_add_f32_dpp v10, v{BA + 1}, v{BA} row_ror:8 {DPPF}
    v_add_f32_dpp v12, v{BA + 3}, v{BA + 2} row_ror:8 {DPPF}
    {'s_cbranch_execz L_wend' if WARM else ''}
    s_mov_b32 exec_lo, 0x00ff00ff
    s_mov_b32 exec_hi, 0x00ff00ff
    global_store_dwordx2 v204, v[10:11], s[32:33] sc1
    global_store_dwordx2 v204, v[12:13], s[32:33] offset:16 sc1
    ''')
    g.stamp(9)
    g('s_barrier')
    if o['b3b']:
        g('s_barrier')
    g('s_barrier')
    g.stamp_out(11, '0')
    g('s_endpgm')
    if not o['mergez']:
        g('''
        L_retryz:
        s_sub_u32 s40, s40, 1
        s_cbranch_scc1 L_end
        s_mov_b64 exec, s[54:55]
        ''')
        polls(ZP, 'v202', 3)
        g('''
        s_mov_b64 exec, -1
        s_waitcnt vmcnt(0)
        s_branch L_chkz
        ''')
    if WARM:
        g('L_wend:')
        if o.get('wdiag'):
            g.stamp(1)
            g.stamp_out(2, '5')
        g('s_endpgm')


def gen(opt):
    o = dict(DEFAULTS); o.update(opt)
    if o['pure']:
        o['warm'] = min(o['warm'], 1)
    g = G(o)
    g.stamp(0)
    g('''
    s_load_dwordx16 s[8:23], s[0:1], 0
    ''')
    if not o['ksplit']:
        g('s_load_dwordx8 s[24:31], s[0:1], 64\ns_load_dwordx2 s[32:33], s[0:1], 96')
    g('''
    v_readfirstlane_b32 s3, v0
    s_cmp_ge_u32 s2, 256
    s_cbranch_scc1 L_end
    ''')
    if o['lin']:
        g('s_lshr_b32 s4, s2, 3\ns_and_b32 s5, s2, 7')
    else:
        g('s_and_b32 s4, s2, 31\ns_lshr_b32 s5, s2, 5')
    if o.get('latp'):
        sp, off = o['latp']
        g(f'''
        s_waitcnt lgkmcnt(0)
        s_cmp_eq_u32 s2, 0
        s_cselect_b32 s35, s3, 0
        s_cmp_eq_u32 s35, 320
        s_cbranch_scc0 L_lp1
        s_mov_b64 exec, 1
        v_mov_b32 v2, {off + 0x1000}
        global_load_dword v3, v2, {sp} nt
        s_waitcnt vmcnt(0)
        s_mov_b32 s39, 0
        ''')
        for i in range(4):
            g(f'''
            v_mov_b32 v2, {off + 0x2000 * i + 0x200}
            s_memtime s[44:45]
            s_waitcnt lgkmcnt(0)
            global_load_dword v3, v2, {sp} nt
            s_waitcnt vmcnt(0)
            s_memtime s[46:47]
            s_waitcnt lgkmcnt(0)
            s_sub_u32 s46, s46, s44
            s_add_u32 s39, s39, s46
            ''')
        g(f'''
        s_lshr_b32 s39, s39, 3
        v_mov_b32 v2, {WS_ST + 0x100000}
        v_mov_b32 v3, s39
        global_store_dword v2, v3, s[32:33] sc1
        s_mov_b64 exec, -1
        L_lp1:
        s_memrealtime s[44:45]
        s_waitcnt lgkmcnt(0)
        s_sub_u32 s44, s44, s60
        s_cmp_lt_u32 s44, 400
        s_cbranch_scc1 L_lp1
        ''')
    if o['five']:
        o['warm'] = 0
        g('''
        v_and_b32 v1, 63, v0
        s_cmp_lt_u32 s3, 64
        s_cbranch_scc0 L_stream
        s_getpc_b64 s[36:37]
        L_pc:
        s_bfe_u32 s35, s2, 0x30003
        s_mul_i32 s35, s35, 1280
        v_lshl_add_u32 v15, v1, 7, s35
        v_min_u32 v15, L_codeend-L_pc-4, v15
        s_mov_b64 exec, 0x3ff
        global_load_dword v247, v15, s[36:37]
        s_mov_b64 exec, -1
        ''')
    else:
        g('''
        v_and_b32 v1, 63, v0
        s_cmp_lt_u32 s3, 64
        s_cbranch_scc1 L_aux
        s_cmp_lt_u32 s3, 320
        s_cbranch_scc1 L_stream
        ''')
    if o['five']:
        pass
    elif o['cpfsplit']:
        g('''
        s_getpc_b64 s[36:37]
        L_pc:
        s_bfe_u32 s35, s2, 0x30003
        s_mul_i32 s35, s35, 1280
        v_lshl_add_u32 v2, v1, 7, s35
        v_min_u32 v2, L_codeend-L_pc-4, v2
        s_mov_b64 exec, 0x3ff
        global_load_dword v2, v2, s[36:37]
        s_barrier
        ''')
    else:
        g('''
        s_getpc_b64 s[36:37]
        L_pc:
        v_lshlrev_b32 v2, 7, v1
        v_add_u32 v3, 0x2000, v2
        v_min_u32 v2, L_codeend-L_pc-4, v2
        v_min_u32 v3, L_codeend-L_pc-4, v3
        global_load_dword v2, v2, s[36:37]
        global_load_dword v3, v3, s[36:37]
        s_barrier
        ''')
    if o['warm'] and not o['pure']:
        g(f'''
        {'s_load_dwordx8 s[24:31], s[0:1], 64' if o['ksplit'] else ''}
        {'s_load_dwordx2 s[32:33], s[0:1], 96' if o['ksplit'] else ''}
        s_mov_b32 s6, 0
        s_mov_b64 s[54:55], 0
        s_waitcnt vmcnt(0) lgkmcnt(0)
        s_mov_b64 exec, 0
        s_branch L_warm1
        ''')
    elif not o['five']:
        g('s_endpgm')
    pro = g.take()
    gen_aux(g, o)
    aux = g.take()
    gen_stream(g, o)
    strm = g.take()
    if o['align']:
        strm = [f'.p2align {o["align"]}'] + strm
        aux = ([f'.p2align {o["align"]}'] if not o['five'] else []) + aux
    body = pro + aux + strm + ['L_codeend:']
    head = open('recurrent_scan__sliding_block_cached__mixer_channel_mlp__decode.s.ref').read().split('; Override launch')[0]
    return head + f'''; Single fused launch, one workgroup (6 waves) per CU: workgroup b = (head h = b & 31, key split s = b >> 5).
;   wave 0     layernorms, a 64-row slab of x@wq and of y@w1 (slab/head index from b in linear order), q gather, MLP layer 2
;   waves 1-4  stream 256 keys of K and V, exact softmax partials, then 128 x 64 of wo; 32 of them finish 16 outputs each
;   wave 5     pulls the code into L2 and walks the late code with EXEC = 0 (branching round every memory op and barrier)
; Row-major weights are multiplied without a transpose: the A fragment holds one multiplier per lane in one half-word.
; Hand-offs go through d_ws as 16- or 8-byte granules that carry a tag = (word 0 of d_ws at entry) + 0x01010101;
; the last reducer step stores the tag back to word 0.  All hand-offs are write-through (sc1) except the o partials,
; which use plain stores only when the eight workgroups of the head have reported the same XCC id in this launch.
; Every spin is bounded.  Intermediates are rounded to bf16 where the reference rounds them.
; @launch grid=(256,1,1) block=({320 if o['five'] else 384},1,1) lds={LDS_BYTES}
.amdgcn_target "amdgcn-amd-amdhsa--gfx950"
.text
.globl {KN}
.p2align 8
.type {KN},@function
{KN}:
''' + '\n'.join(body) + f'''
.section .rodata,"a"
.p2align 6
.amdhsa_kernel {KN}
  .amdhsa_next_free_vgpr {248 if (o['yv'] == 2 or o['five']) else 244}
  .amdhsa_next_free_sgpr {96 if o['diag'] else 64}
  .amdhsa_accum_offset {248 if (o['yv'] == 2 or o['five']) else 244}
  .amdhsa_group_segment_fixed_size 0
  .amdhsa_kernarg_size 104
  .amdhsa_user_sgpr_count 2
  .amdhsa_user_sgpr_kernarg_segment_ptr 1
  .amdhsa_system_sgpr_workgroup_id_x 1
  .amdhsa_float_denorm_mode_32 3
.end_amdhsa_kernel
'''


if __name__ == '__main__':
    out = sys.argv[1]
    opt = eval(sys.argv[2]) if len(sys.argv) > 2 else {}
    open(out, 'w').write(gen(opt))
```
